```python
import torch

def _softmax(x, axis=-1):
    return torch.softmax(x, dim=axis)

def _gelu(x):
    return torch.nn.functional.gelu(x, approximate='tanh')

def _silu(x):
    return torch.nn.functional.silu(x)

def _sigmoid(x):
    return torch.sigmoid(x)

def _layernorm(x, axis=-1, eps=1e-05):
    m = x.mean(dim=axis, keepdim=True)
    v = x.var(dim=axis, keepdim=True, unbiased=False)
    return (x - m) / torch.sqrt(v + eps)

def _scatter_add(tgt, idx, src, axis=0):
    return tgt.clone().index_add_(axis, idx, src)

def _segment_sum(src, seg, n):
    out = torch.zeros((n,) + src.shape[1:], dtype=src.dtype)
    return out.index_add_(0, seg, src)

def _pad(x, pw):
    flat = tuple((v for pair in reversed(pw) for v in pair))
    return torch.nn.functional.pad(x, flat)
kernel_name = 'adaLN_cond__sliding_block_cached__glu_gated_swiglu__decode'

def setup_inputs():

    _w = lambda a: (lambda t: t.to(torch.bfloat16) if t.is_floating_point() else t)(torch.as_tensor(a))

    def _A_setup():
        B, Sq, D = (2, 1, 512)
        Hq, Hkv, Sk, Dh = (32, 8, 32768, 128)
        assert Hq % Hkv == 0, (Hq, Hkv)
        return {'x': _w((lambda *s: torch.randn(*s, dtype=torch.bfloat16) * 0.05)(B, Sq, D)), 'k_cache': _w((lambda *s: torch.randn(*s, dtype=torch.bfloat16) * 3.2)(B, Hkv, Sk, Dh)), 'v_cache': _w((lambda *s: torch.randn(*s, dtype=torch.bfloat16) * 3.2)(B, Hkv, Sk, Dh)), 'wq': _w((lambda *s: torch.randn(*s, dtype=torch.bfloat16) * 3.2)(D, Hq * Dh) * D ** (-0.5)), 'wo': _w((lambda *s: torch.randn(*s, dtype=torch.bfloat16) * 3.2)(Hq * Dh, D) * (Hq * Dh) ** (-0.5))}
    _A_in = _A_setup()

    def _B_setup():
        B, S, D, F = (2, 1, 512, 1792)
        return {'x': _w((lambda *s: torch.randn(*s, dtype=torch.bfloat16) * 0.05)(B, S, D)), 'w1': _w((lambda *s: torch.randn(*s, dtype=torch.bfloat16) * 3.2)(D, F) * (2.0 / D) ** 0.5), 'w3': _w((lambda *s: torch.randn(*s, dtype=torch.bfloat16) * 3.2)(D, F) * (2.0 / D) ** 0.5), 'w2': _w((lambda *s: torch.randn(*s, dtype=torch.bfloat16) * 3.2)(F, D) * (2.0 / F) ** 0.5)}
    _B_in = _B_setup()
    return {'A_x': _A_in['x'], 'A_k_cache': _A_in['k_cache'], 'A_v_cache': _A_in['v_cache'], 'A_wq': _A_in['wq'], 'A_wo': _A_in['wo'], 'B_x': _B_in['x'], 'B_w1': _B_in['w1'], 'B_w3': _B_in['w3'], 'B_w2': _B_in['w2'], 'c': _w((lambda *s: torch.randn(*s, dtype=torch.bfloat16) * 0.2)(2, 512) * 8.0), 'w_mod': _w((lambda *s: torch.randn(*s, dtype=torch.bfloat16) * 0.2)(512, 6 * 512) * 512 ** (-0.5) * 8.0)}

def reference(A_x, A_k_cache, A_v_cache, A_wq, A_wo, B_x, B_w1, B_w3, B_w2, c, w_mod):

    def _A_ref(x, k_cache, v_cache, wq, wo):
        B, Sq, D = x.shape
        Hq, Dh = (32, 128)
        Hkv, Sk = (k_cache.shape[1], k_cache.shape[2])
        W = min(4096, max(256, Sk // 4))
        rep = Hq // Hkv
        q = (lambda x, *d: x.permute(*d))((x @ wq).reshape(B, Sq, Hq, Dh), 0, 2, 1, 3)
        k = (lambda x, n, axis: torch.repeat_interleave(x, n, dim=axis))(k_cache[:, :, Sk - W:, :], rep, axis=1)
        v = (lambda x, n, axis: torch.repeat_interleave(x, n, dim=axis))(v_cache[:, :, Sk - W:, :], rep, axis=1)
        scores = torch.einsum('bhqd,bhkd->bhqk', q, k) * Dh ** (-0.5)
        p = _softmax(scores, axis=-1)
        o = torch.einsum('bhqk,bhkd->bhqd', p, v)
        return (lambda x, *d: x.permute(*d))(o, 0, 2, 1, 3).reshape(B, Sq, Hq * Dh) @ wo

    def _B_ref(x, w1, w3, w2):
        gate = torch.einsum('bsd,df->bsf', x, w1)
        up = torch.einsum('bsd,df->bsf', x, w3)
        h = _silu(gate) * up
        out = torch.einsum('bsf,fd->bsd', h, w2)
        return out
    x = A_x
    mod = (_silu(c) @ w_mod).reshape(c.shape[0], 6, 1, -1)
    sa, ca, ga, sb, cb, gb = (mod[:, 0].clone(), mod[:, 1].clone(), mod[:, 2].clone(), mod[:, 3].clone(), mod[:, 4].clone(), mod[:, 5].clone())
    h = _layernorm(x, axis=-1) * (1 + ca) + sa
    x = x + ga * _A_ref(h, A_k_cache, A_v_cache, A_wq, A_wo)
    h = _layernorm(x, axis=-1) * (1 + cb) + sb
    x = x + gb * _B_ref(h, B_w1, B_w3, B_w2)
    return x
```

```python
import re
TRANS = ('v_exp_f32','v_log_f32','v_rcp_f32','v_rsq_f32','v_sqrt_f32','v_sin_f32','v_cos_f32','v_rcp_iflag_f32')

def expand(tok):
    tok = tok.strip()
    neg = tok.lstrip('-')
    m = re.match(r'^abs\((.*)\)$', neg)
    if m: neg = m.group(1)
    neg = neg.strip('|')
    m = re.match(r'^([vsa])\[(\d+):(\d+)\]$', neg)
    if m: return [f'{m.group(1)}{k}' for k in range(int(m.group(2)), int(m.group(3))+1)]
    m = re.match(r'^([vsa])(\d+)$', neg)
    if m: return [neg]
    if neg in ('vcc',): return ['vcc_lo','vcc_hi']
    if neg in ('exec',): return ['exec_lo','exec_hi']
    if neg in ('vcc_lo','vcc_hi','exec_lo','exec_hi','m0','scc'): return [neg]
    return []

class Ins:
    def __init__(s, text):
        s.text = text
        t = text.split(';')[0].strip()
        s.label = None; s.op=None
        s.w=set(); s.r=set(); s.srcC=set(); s.AB=set(); s.storedata=set()
        s.kind='other'; s.dpp=False; s.states=1; s.target=None; s.lanesel=set(); s.cexact=None
        if not t: s.kind='empty'; s.states=0; return
        if t.endswith(':'): s.kind='label'; s.label=t[:-1]; s.states=0; return
        if t.startswith('.'): s.kind='dir'; s.states=0; return
        parts = t.split(None,1)
        op = parts[0]; s.op=op
        rest = parts[1] if len(parts)>1 else ''
        ops=[]; cur=''; depth=0
        for ch in rest:
            if ch=='[': depth+=1
            if ch==']': depth-=1
            if ch==',' and depth==0: ops.append(cur.strip()); cur=''
            else: cur+=ch
        if cur.strip(): ops.append(cur.strip())
        mods=''
        if ops:
            sp = ops[-1].split(None,1)
            ops[-1]=sp[0]
            mods = sp[1] if len(sp)>1 else ''
        s.ops=ops; s.mods=mods
        R = lambda k: expand(ops[k]) if k < len(ops) else []
        if op=='s_nop':
            s.kind='salu'; s.states=int(ops[0],0)+1; return
        if op.startswith('v_mfma'):
            s.kind='mfma'
            s.w=set(R(0)); s.AB=set(R(1))|set(R(2)); s.srcC=set(R(3)); s.r=s.AB|s.srcC
            s.cexact = (ops[0]==ops[3])
            s.dname=ops[0]; s.cname=ops[3]
            return
        if op.startswith('v_'):
            s.kind='valu'
            s.dpp = ('_dpp' in op) or any(x in mods for x in ('row_shl','row_shr','row_ror','quad_perm','row_bcast','row_newbcast','row_mirror','row_half_mirror','wave_'))
            if op.startswith('v_cmp'):
                s.w=set(R(0));
                for k in range(1,len(ops)): s.r|=set(R(k))
            elif op.startswith('v_permlane16_swap') or op.startswith('v_permlane32_swap'):
                s.w=set(R(0))|set(R(1)); s.r=set(s.w); s.perm=True
            elif op.startswith('v_readlane'):
                s.w=set(R(0)); s.r=set(R(1))|set(R(2)); s.lanesel=set(R(2))
            elif op.startswith('v_readfirstlane'):
                s.w=set(R(0)); s.r=set(R(1))
            elif op.startswith('v_writelane'):
                s.w=set(R(0)); s.r=set(R(1))|set(R(2))|set(R(0)); s.lanesel=set(R(2))
            elif op.startswith(('v_add_co','v_sub_co','v_addc_co','v_subb_co','v_subrev_co')):
                s.w=set(R(0))|set(R(1))
                for k in range(2,len(ops)): s.r|=set(R(k))
            else:
                s.w=set(R(0))
                for k in range(1,len(ops)): s.r|=set(R(k))
                if op.startswith('v_cndmask') and len(ops)==3: s.r|={'vcc_lo','vcc_hi'}
                if op.startswith(('v_fmac','v_mac','v_pk_fmac','v_dot2c')) : s.r|=set(R(0))
                if s.dpp: s.r|=set(R(0))
            return
        if op.startswith('buffer_') or op.startswith('global_'):
            s.kind='vmem'
            if 'load' in op and 'lds' not in mods:
                s.w=set(R(0))
                for k in range(1,len(ops)): s.r|=set(R(k))
            elif 'store' in op:
                if op.startswith('buffer_'):
                    s.storedata=set(R(0))
                else:
                    s.storedata=set(R(1))
                for k in range(len(ops)): s.r|=set(R(k))
                if not (op.endswith('x3') or op.endswith('x4')): s.storedata=set()
            else:
                for k in range(len(ops)): s.r|=set(R(k))
                if 'sc0' in mods: s.w=set(R(0))
            return
        if op.startswith('ds_'):
            s.kind='ds'
            if op.startswith(('ds_read','ds_bpermute','ds_permute','ds_swizzle')) or '_rtn' in op:
                s.w=set(R(0))
                for k in range(1,len(ops)): s.r|=set(R(k))
            else:
                for k in range(len(ops)): s.r|=set(R(k))
            return
        if op.startswith('s_'):
            s.kind='salu'
            if op.startswith(('s_branch','s_cbranch')):
                s.target=ops[0]; s.kind='branch'; return
            if op in ('s_endpgm',): s.kind='end'; return
            if op.startswith(('s_waitcnt','s_barrier','s_sleep','s_setprio','s_cmp','s_bitcmp')):
                for k in range(len(ops)): s.r|=set(R(k))
                return
            if ops:
                s.w=set(R(0))
                for k in range(1,len(ops)): s.r|=set(R(k))
            return
        raise ValueError('unknown instr '+text)

def isv(r): return r[0]=='v' and r[1:].isdigit()
def iss(r): return (r[0]=='s' and r[1:].isdigit()) or r.startswith('vcc')

def need(p, c):
    n=0
    if p.kind=='valu':
        pv={x for x in p.w if isv(x)}; ps={x for x in p.w if iss(x)}
        if c.kind=='valu':
            if c.dpp and pv & c.r: n=max(n,2)
            if getattr(c,'perm',False) and pv & c.r: n=max(n,2)
            if c.op.startswith(('v_readlane','v_readfirstlane')) and pv & c.r: n=max(n,1)
            if p.op.replace('_e32','').replace('_e64','') in TRANS and (pv & c.r): n=max(n,1)
            if ps & c.r: n=max(n,2)
            if ps & c.lanesel: n=max(n,4)
        if c.kind=='vmem' and ps & c.r: n=max(n,5)
        if c.kind=='mfma' and pv & c.r: n=max(n,2)
    if p.kind=='vmem' and p.storedata:
        if c.kind=='valu' and p.storedata & c.w: n=max(n,2)
        elif p.storedata & c.w: n=max(n,1)
    if p.kind=='mfma':
        if c.kind=='mfma':
            if p.w & c.srcC:
                if not (c.cname==p.dname): n=max(n,6)
            if p.w & c.AB: n=max(n,8)
            if (p.w & c.w) and not (c.cname==p.dname and c.dname==p.dname): n=max(n,6)
        elif c.kind in ('valu','vmem','ds'):
            if p.w & (c.r|c.w): n=max(n,8)
            if c.kind=='valu' and p.srcC & c.w: n=max(n,3)
    return n

def fix_hazards(lines, window=12):
    ins=[Ins(l) for l in lines]
    snaps={}
    total_nops=0
    for it in range(3):
        out=[]; hist=[[]]
        total_nops=0
        newsnaps={}
        def push(i):
            nonlocal hist
            nh=[]
            for h in hist:
                h2=[(p,d+i.states) for (p,d) in h if d+i.states<=window]
                if i.kind in ('valu','vmem','mfma'): h2.append((i,0))
                nh.append(h2)
            seen=set(); res=[]
            for h in nh:
                key=tuple((id(p),d) for p,d in h)
                if key not in seen: seen.add(key); res.append(h)
            hist=res[:64]
        for i in ins:
            if i.kind=='label':
                for h in snaps.get(i.label,[]): hist.append(list(h))
                out.append(i.text); continue
            if i.states==0:
                out.append(i.text); continue
            req=0
            for h in hist:
                for (p,d) in h:
                    n=need(p,i)
                    if n>d: req=max(req,n-d)
            if req>0:
                nop=Ins(f'  s_nop {req-1}')
                out.append(nop.text); push(nop); total_nops+=req
            out.append(i.text); push(i)
            if i.kind=='branch':
                newsnaps.setdefault(i.target,[]).extend([list(h) for h in hist])
                if i.op=='s_branch': hist=[[]]
            if i.kind=='end': hist=[[]]
        snaps=newsnaps
    return out, total_nops

class Asm:
    def __init__(s): s.L=[]; s.n=0
    def __call__(s, text):
        for l in text.split('\n'):
            l=l.rstrip()
            if l.strip(): s.L.append('  '+l.strip() if not l.strip().endswith(':') else l.strip())
    def label(s, base):
        s.n+=1; return f'L_{base}_{s.n}'
```

```python
import sys
sys.path.insert(0,'gen')
from asmlib import *
NAME='adaLN_cond__sliding_block_cached__glu_gated_swiglu__decode'

WS_MOD  = 0x1000
WS_Q    = 0x8000
WS_AS   = 0x10000
WS_AO   = 0xA0000
WS_X1   = 0xB8000
WS_XS   = 0xC0000
WS_GU   = 0xC1000
WS_YO   = 0xC8000
WS_PROF = 0xE0000
WS_SIZE = 0x160000
L_Q=0x0; L_F=0x400; L_KM=0x500; L_KL=0x540; L_KO=0x600; L_ACT=0x2A00; L_PART=0x3400; L_OACT=0x3C00; L_H2=0x3E80; L_SIZE=0x4400
F_Q=0; F_M=4; F_O=8; F_T1=12; F_T2=16; F_KI=20
BSTR=384
sW=3; sG=4; sI=5; sE=6; sT=7
pX=16; pK=18; pV=20; pWQ=22; pWO=24; pW1=28; pW3=30; pW2=32; pC=34; pWM=36; pOUT=38; pDBG=40; pWS=42
WS='s[44:47]'; SA='s[48:51]'; SB='s[52:55]'; SC='s[56:59]'; SD='s[60:63]'
sTW=64; sSelLo=80; sSelHi=81; sHiMask=82; sCNT=84; sLog2e=85
LOG2E='0x3fb8aa3b'

class K:
    def __init__(s, prof=False, thr=4, opts=None):
        s.A=Asm(); s.prof=prof; s.thr=thr; s.o=opts or {}
    def srd(s, base, ptr, size):
        A=s.A
        A(f's_mov_b32 s{base}, s{ptr}\ns_mov_b32 s{base+1}, s{ptr+1}\ns_mov_b32 s{base+2}, {hex(size)}\ns_mov_b32 s{base+3}, 0x20000')
    def stamp(s, idx, vst):
        if not s.prof: return
        s.A(f's_memrealtime s[86:87]\ns_waitcnt lgkmcnt(0)\nv_writelane_b32 v{vst}, s86, {idx}')
    def stamp_flush(s, vst, vtmp):
        if not s.prof: return
        A=s.A
        A(f's_mov_b64 exec, -1')
        A(f's_lshl_b32 s88, s2, 3\ns_add_u32 s88, s88, s{sW}\ns_lshl_b32 s88, s88, 8\ns_add_u32 s88, s88, {hex(WS_PROF)}')
        A(f'v_mbcnt_lo_u32_b32 v{vtmp}, -1, 0\nv_mbcnt_hi_u32_b32 v{vtmp}, -1, v{vtmp}\nv_lshlrev_b32 v{vtmp}, 2, v{vtmp}')
        A(f'buffer_store_dword v{vst}, v{vtmp}, {WS}, s88 offen')
    def poll(s, loads, tmp, pre=None):
        A=s.A; lp=A.label('poll'); dn=A.label('pdone')
        A(f'{lp}:')
        for (d,va,so,imm) in loads:
            A(f'buffer_load_dwordx4 v[{d}:{d+3}], v{va}, {WS}, {so} offen offset:{imm} sc1')
        A('s_waitcnt vmcnt(0)')
        first=True
        for (d,va,so,imm) in loads:
            if first: A(f'v_xor_b32 v{tmp}, s{sT}, v{d+3}'); first=False
            else:
                A(f'v_xor_b32 v{tmp+1}, s{sT}, v{d+3}\nv_or_b32 v{tmp}, v{tmp}, v{tmp+1}')
        A(f'v_cmp_ne_u32 vcc, 0, v{tmp}')
        A(f's_cbranch_vccz {dn}')
        A(f's_sub_u32 s{sCNT}, s{sCNT}, 1\ns_cbranch_scc0 {lp}\ns_mov_b32 s{sCNT}, 0')
        A(f'{dn}:')
    def setflag(s, word, vaddr_tmp, vone, swave=None):
        A=s.A
        if swave is None:
            A(f'v_mov_b32 v{vaddr_tmp}, {L_F+4*word}')
        else:
            A(f's_lshl_b32 s8, s{swave}, 2\ns_add_u32 s8, s8, {L_F+4*word}\nv_mov_b32 v{vaddr_tmp}, s8')
        A(f'v_mov_b32 v{vone}, 1')
        A(f's_mov_b64 s[10:11], exec\ns_mov_b64 exec, 1')
        A(f'ds_write_b32 v{vaddr_tmp}, v{vone}')
        A(f's_mov_b64 exec, s[10:11]')
    def waitflags4(s, word, vt, extra=None):
        A=s.A; lp=A.label('lw'); dn=A.label('lwd')
        A(f'v_mov_b32 v{vt+4}, {L_F+4*word}')
        A(f'{lp}:')
        A(f'ds_read_b128 v[{vt}:{vt+3}], v{vt+4}')
        for e in (extra or []): A(e)
        A('s_waitcnt lgkmcnt(0)')
        A(f'v_min3_u32 v{vt}, v{vt}, v{vt+1}, v{vt+2}\nv_min_u32 v{vt}, v{vt}, v{vt+3}')
        A(f'v_cmp_ne_u32 vcc, 0, v{vt}')
        A(f's_cbranch_vccnz {dn}')
        A(f's_sub_u32 s{sCNT}, s{sCNT}, 1\ns_cbranch_scc0 {lp}\ns_mov_b32 s{sCNT}, 0')
        A(f'{dn}:')
    def waitflag1(s, word, vt):
        A=s.A; lp=A.label('lw'); dn=A.label('lwd')
        A(f'v_mov_b32 v{vt+1}, {L_F+4*word}')
        A(f'{lp}:')
        A(f'ds_read_b32 v{vt}, v{vt+1}')
        A('s_waitcnt lgkmcnt(0)')
        A(f'v_cmp_ne_u32 vcc, 0, v{vt}')
        A(f's_cbranch_vccnz {dn}')
        A(f's_sub_u32 s{sCNT}, s{sCNT}, 1\ns_cbranch_scc0 {lp}\ns_mov_b32 s{sCNT}, 0')
        A(f'{dn}:')
    def unpack2(s, src, lo, hi):
        s.A(f'v_lshlrev_b32 v{lo}, 16, v{src}\nv_and_b32 v{hi}, s{sHiMask}, v{src}')
    def round4(s, v, t):
        A=s.A
        A(f'v_cvt_pk_bf16_f32 v{t}, v{v}, v{v+1}\nv_cvt_pk_bf16_f32 v{t+1}, v{v+2}, v{v+3}')
        s.unpack2(t, v, v+1); s.unpack2(t+1, v+2, v+3)
    def round1(s, v, t):
        A=s.A
        A(f'v_cvt_pk_bf16_f32 v{t}, v{v}, v{v}\nv_lshlrev_b32 v{v}, 16, v{t}')
    def transpose(s, raw, dst):
        A=s.A
        for jj in range(4):
            for pp in range(4):
                a=raw+(2*pp)*4+jj; b=raw+(2*pp+1)*4+jj
                A(f'v_perm_b32 v{dst+(2*jj)*4+pp}, v{b}, v{a}, s{sSelLo}')
                A(f'v_perm_b32 v{dst+(2*jj+1)*4+pp}, v{b}, v{a}, s{sSelHi}')
    def rowsum16(s, regs, op='v_add_f32'):
        A=s.A
        for sh in (8,4,2,1):
            for r in regs:
                A(f'{op}_dpp v{r}, v{r}, v{r} row_ror:{sh} row_mask:0xf bank_mask:0xf')
    def swap16(s, regs, tmps, op='v_add_f32'):
        A=s.A
        for r,t in zip(regs,tmps): A(f'v_mov_b32 v{t}, v{r}')
        for r,t in zip(regs,tmps): A(f'v_permlane16_swap_b32 v{r}, v{t}')
        for r,t in zip(regs,tmps): A(f'{op} v{r}, v{r}, v{t}')
    def swap32(s, regs, tmps, op='v_add_f32'):
        A=s.A
        for r,t in zip(regs,tmps): A(f'v_mov_b32 v{t}, v{r}')
        for r,t in zip(regs,tmps): A(f'v_permlane32_swap_b32 v{r}, v{t}')
        for r,t in zip(regs,tmps): A(f'{op} v{r}, v{r}, v{t}')
    def mm(s, actaddr, nblk, T, act, acc, R):
        A=s.A
        for blk in range(nblk):
            A(f'ds_read_b128 v[{act+4*blk}:{act+4*blk+3}], v{actaddr} offset:{128*blk}')
        for blk in range(nblk):
            A(f's_waitcnt lgkmcnt({nblk-1-blk})')
            for j in range(8):
                c = '0' if blk==0 else f'v[{acc+4*j}:{acc+4*j+3}]'
                A(f'v_mfma_f32_16x16x32_bf16 v[{acc+4*j}:{acc+4*j+3}], v[{act+4*blk}:{act+4*blk+3}], v[{T+32*blk+4*j}:{T+32*blk+4*j+3}], {c}')
        for j in range(8):
            for b in range(2):
                A(f'v_add_f32_dpp v{R+8*b+j}, v{acc+4*j+2+b}, v{acc+4*j+b} row_shl:8 row_mask:0xf bank_mask:0xf')
    def part_write(s, R, vaddr):
        A=s.A
        A('s_mov_b64 exec, 0xff')
        A(f'ds_write_b128 v{vaddr}, v[{R}:{R+3}]\nds_write_b128 v{vaddr}, v[{R+4}:{R+7}] offset:16')
        A(f'ds_write_b128 v{vaddr}, v[{R+8}:{R+11}] offset:256\nds_write_b128 v{vaddr}, v[{R+12}:{R+15}] offset:272')
        A('s_mov_b64 exec, -1')
    def publishR(s, R, G, vaddr, soff, sc='sc1'):
        A=s.A
        idx=[(0,0),(0,2),(0,4),(0,6),(1,0),(1,2),(1,4),(1,6)]
        slots=[G+0,G+1,G+2,G+4,G+5,G+6,G+8,G+9]
        for (b,j),d in zip(idx,slots):
            A(f'v_cvt_pk_bf16_f32 v{d}, v{R+8*b+j}, v{R+8*b+j+1}')
        A(f'v_mov_b32 v{G+10}, 0')
        A(f'v_mov_b32 v{G+3}, s{sT}\nv_mov_b32 v{G+7}, s{sT}\nv_mov_b32 v{G+11}, s{sT}')
        A('s_mov_b64 exec, 0xff')
        for k in range(3):
            A(f'buffer_store_dwordx4 v[{G+4*k}:{G+4*k+3}], v{vaddr}, {WS}, {soff} offen offset:{16*k} {sc}')
        A('s_mov_b64 exec, -1')

    def prologue(s):
        A=s.A
        A('s_cmp_ge_u32 s2, 256\ns_cbranch_scc1 L_exit')
        A('s_load_dwordx16 s[16:31], s[0:1], 0\ns_load_dwordx8 s[32:39], s[0:1], 64\ns_load_dwordx4 s[40:43], s[0:1], 96')
        A(f'v_lshrrev_b32 v1, 6, v0\nv_and_b32 v0, 63, v0\nv_readfirstlane_b32 s{sW}, v1')
        A(f's_and_b32 s{sG}, s2, 7\ns_lshr_b32 s{sI}, s2, 3')
        A(f's_mov_b32 s{sSelLo}, 0x05040100\ns_mov_b32 s{sSelHi}, 0x07060302\ns_mov_b32 s{sHiMask}, 0xffff0000\ns_mov_b32 s{sCNT}, 200000\ns_mov_b32 s{sLog2e}, {LOG2E}')
        A('s_waitcnt lgkmcnt(0)')
        A(f's_load_dword s{sE}, s[{pWS}:{pWS+1}], 0')
        s.srd(44,pWS,WS_SIZE)
        A(f's_cmp_ge_u32 s{sW}, 4\ns_cbranch_scc1 L_tile')
    def get_tag(s):
        A=s.A
        A(f's_waitcnt lgkmcnt(0)\ns_mul_i32 s{sT}, s{sE}, 1664525\ns_add_u32 s{sT}, s{sT}, 1013904223')

    def kv(s):
        A=s.A; thr=s.thr
        vK=1; vV=2; vQa=3; vKO=4; vST=31; Q=32; D=48; KR=64; VR=128; VT=192; ACC=64
        if s.prof: A(f'v_mov_b32 v{vST}, 0')
        s.stamp(0,vST)
        s.srd(48,pK,0x8000000); s.srd(52,pV,0x8000000)
        A(f's_lshr_b32 s64, s{sI}, 4\ns_and_b32 s65, s{sI}, 15')
        A(f's_lshl_b32 s66, s64, 3\ns_add_u32 s66, s66, s{sG}\ns_lshl_b32 s66, s66, 23\ns_add_u32 s66, s66, {7<<20}\ns_lshl_b32 s67, s65, 16\ns_add_u32 s66, s66, s67')
        A(f's_lshr_b32 s67, s{sI}, 2\ns_add_u32 s67, s67, s{sI}\ns_add_u32 s67, s67, s{sG}')
        for t in range(4):
            A(f's_add_u32 s68, s67, {t}\ns_and_b32 s68, s68, 3\ns_lshl_b32 s68, s68, 2\ns_add_u32 s68, s68, s{sW}\ns_lshl_b32 s68, s68, 12\ns_add_u32 s{70+t}, s66, s68')
        A(f'v_and_b32 v5, 3, v0\nv_lshlrev_b32 v5, 10, v5\nv_bfe_u32 v6, v0, 2, 2\nv_lshlrev_b32 v6, 8, v6\nv_lshrrev_b32 v7, 4, v0\nv_lshlrev_b32 v7, 4, v7\nv_add3_u32 v{vK}, v5, v6, v7')
        A(f'v_lshlrev_b32 v{vV}, 4, v0')
        cnt=0
        def thrw():
            nonlocal cnt
            cnt+=1
            if thr and cnt>thr: A(f's_waitcnt vmcnt({thr})')
        for t in range(4):
            for kk in range(4):
                A(f'buffer_load_dwordx4 v[{KR+16*t+4*kk}:{KR+16*t+4*kk+3}], v{vK}, {SA}, s{70+t} offen offset:{64*kk} nt')
                if cnt==3:
                    s.get_tag(); A('s_barrier')
                thrw()
        s.stamp(1,vST)
        A(f'v_and_b32 v5, 3, v0\nv_lshlrev_b32 v5, 8, v5\nv_lshrrev_b32 v7, 4, v0\nv_lshlrev_b32 v7, 4, v7\nv_add_u32 v{vQa}, v5, v7')
        A(f'v_and_b32 v5, 15, v0\nv_mul_u32_u24 v5, 576, v5\ns_mul_i32 s8, s{sW}, 2304\ns_add_u32 s8, s8, {L_KO}\nv_add3_u32 v{vKO}, v5, v7, s8')
        for t in range(4):
            for r in range(4):
                A(f'buffer_load_dwordx4 v[{VR+16*t+4*r}:{VR+16*t+4*r+3}], v{vV}, {SB}, s{70+t} offen offset:{1024*r} nt')
                thrw()
        s.stamp(2,vST)
        s.setflag(F_KI, 5, 6, swave=sW)
        A('s_waitcnt vmcnt(8)')
        s.transpose(VR, VT)
        s.waitflag1(F_Q, 8)
        s.stamp(3,vST)
        for kk in range(4):
            A(f'ds_read_b128 v[{Q+4*kk}:{Q+4*kk+3}], v{vQa} offset:{L_Q+64*kk}')
        for kk in range(4):
            A(f's_waitcnt lgkmcnt({3-kk})')
            for t in range(4):
                c='0' if kk==0 else f'v[{D+4*t}:{D+4*t+3}]'
                A(f'v_mfma_f32_16x16x32_bf16 v[{D+4*t}:{D+4*t+3}], v[{KR+16*t+4*kk}:{KR+16*t+4*kk+3}], v[{Q+4*kk}:{Q+4*kk+3}], {c}')
        A('s_mov_b32 s10, 0x00f000f0\ns_mov_b32 s11, 0x00f000f0\ns_mov_b32 s12, 0x0f000f00\ns_mov_b32 s13, 0x0f000f00\ns_mov_b32 s14, 0xf000f000\ns_mov_b32 s15, 0xf000f000')
        S=8
        for r in range(4):
            A(f'v_cndmask_b32 v{S+r}, v{D+r}, v{D+4+r}, s[10:11]')
        for r in range(4):
            A(f'v_cndmask_b32 v{S+r}, v{S+r}, v{D+8+r}, s[12:13]')
        for r in range(4):
            A(f'v_cndmask_b32 v{S+r}, v{S+r}, v{D+12+r}, s[14:15]')
        s.round4(S,12)
        A('s_mov_b32 s8, 0x3db504f3')
        for r in range(4): A(f'v_mul_f32 v{S+r}, s8, v{S+r}')
        s.round4(S,12)
        A(f'v_max3_f32 v12, v{S}, v{S+1}, v{S+2}\nv_max_f32 v12, v12, v{S+3}')
        A('v_max_f32_dpp v12, v12, v12 row_ror:4 row_mask:0xf bank_mask:0xf\nv_max_f32_dpp v12, v12, v12 row_ror:8 row_mask:0xf bank_mask:0xf')
        s.swap16([12],[13],'v_max_f32'); s.swap32([12],[13],'v_max_f32')
        A(f'v_and_b32 v14, 3, v0\nv_lshlrev_b32 v14, 4, v14\ns_lshl_b32 s8, s{sW}, 2\nv_add_u32 v15, s8, v14')
        A('s_mov_b64 exec, 0xf')
        A(f'ds_write_b32 v15, v12 offset:{L_KM}')
        A('s_mov_b64 exec, -1')
        s.setflag(F_M, 16, 17, swave=sW)
        s.waitflags4(F_M, 16, extra=[f'ds_read_b128 v[24:27], v14 offset:{L_KM}'])
        A('v_max3_f32 v12, v24, v25, v26\nv_max_f32 v12, v12, v27')
        s.stamp(4,vST)
        for r in range(4): A(f'v_sub_f32 v{S+r}, v{S+r}, v12')
        for r in range(4): A(f'v_mul_f32 v{S+r}, s{sLog2e}, v{S+r}')
        for r in range(4): A(f'v_exp_f32 v{S+r}, v{S+r}')
        P=16
        A(f'v_cvt_pk_bf16_f32 v{P}, v{S}, v{S+1}\nv_cvt_pk_bf16_f32 v{P+1}, v{S+2}, v{S+3}')
        A(f'v_add_f32 v13, v{S}, v{S+1}\nv_add_f32 v28, v{S+2}, v{S+3}\nv_add_f32 v13, v13, v28')
        for (d,src,sh) in [(P+2,P,4),(P+3,P+1,4),(P+4,P,8),(P+5,P+1,8),(P+6,P,12),(P+7,P+1,12)]:
            A(f'v_mov_b32_dpp v{d}, v{src} row_shl:{sh} row_mask:0xf bank_mask:0xf bound_ctrl:0')
        for j in range(8):
            A(f'v_mfma_f32_16x16x32_bf16 v[{ACC+4*j}:{ACC+4*j+3}], v[{VT+4*j}:{VT+4*j+3}], v[{P}:{P+3}], 0')
        A('v_add_f32_dpp v13, v13, v13 row_ror:4 row_mask:0xf bank_mask:0xf\nv_add_f32_dpp v13, v13, v13 row_ror:8 row_mask:0xf bank_mask:0xf')
        s.swap16([13],[28]); s.swap32([13],[28])
        A('s_mov_b64 exec, 0xf')
        A(f'ds_write_b32 v15, v13 offset:{L_KL}')
        A('s_mov_b64 exec, -1')
        A('s_waitcnt vmcnt(0)')
        s.stamp(5,vST)
        s.transpose(VR+32, VT+32)
        for j in range(8):
            A(f'v_mfma_f32_16x16x32_bf16 v[{ACC+4*j}:{ACC+4*j+3}], v[{VT+32+4*j}:{VT+32+4*j+3}], v[{P+4}:{P+7}], v[{ACC+4*j}:{ACC+4*j+3}]')
        A('s_mov_b32 s10, 0x000f000f\ns_mov_b32 s11, 0x000f000f\ns_mov_b64 exec, s[10:11]')
        for j in range(8):
            A(f'ds_write_b128 v{vKO}, v[{ACC+4*j}:{ACC+4*j+3}] offset:{64*j}')
        A('s_mov_b64 exec, -1')
        s.setflag(F_O, 16, 17, swave=sW)
        A(f's_mul_i32 s8, s{sW}, 576\ns_add_u32 s8, s8, {L_KO}\nv_and_b32 v24, 31, v0\nv_lshlrev_b32 v24, 4, v24\nv_add_u32 v24, s8, v24')
        A(f's_lshl_b32 s9, s{sW}, 4\ns_add_u32 s9, s9, {L_KL}\nv_mov_b32 v25, s9')
        O=32
        ex=[f'ds_read_b128 v[{O+4*w}:{O+4*w+3}], v24 offset:{2304*w}' for w in range(4)]+[f'ds_read_b128 v[48:51], v25']
        s.waitflags4(F_O, 16, extra=ex)
        for r in range(4):
            A(f'v_add_f32 v{O+r}, v{O+r}, v{O+4+r}\nv_add_f32 v{O+8+r}, v{O+8+r}, v{O+12+r}')
        for r in range(4):
            A(f'v_add_f32 v{O+r}, v{O+r}, v{O+8+r}')
        A('v_add_f32 v48, v48, v49\nv_add_f32 v50, v50, v51\nv_add_f32 v48, v48, v50')
        A(f'v_readlane_b32 s8, v12, s{sW}')
        G=52
        A(f'v_cvt_pk_bf16_f32 v{G}, v{O}, v{O+1}\nv_cvt_pk_bf16_f32 v{G+1}, v{O+2}, v{O+3}')
        A(f'v_mov_b32 v56, s8')
        A('s_mov_b32 s10, 0\ns_mov_b32 s11, 1')
        A(f'v_cndmask_b32 v{G}, v{G}, v56, s[10:11]\nv_cndmask_b32 v{G+1}, v{G+1}, v48, s[10:11]')
        A(f'v_mov_b32 v{G+2}, 0\nv_mov_b32 v{G+3}, s{sT}')
        A(f's_lshl_b32 s8, s{sG}, 2\ns_add_u32 s8, s8, s{sW}\ns_lshl_b32 s8, s8, 1\ns_add_u32 s8, s8, s64\ns_lshl_b32 s8, s8, 4\ns_add_u32 s8, s8, s65\ns_mul_i32 s8, s8, 576\ns_add_u32 s8, s8, {hex(WS_AS)}')
        A(f'v_lshlrev_b32 v57, 4, v0')
        A('s_mov_b32 s10, -1\ns_mov_b32 s11, 1\ns_mov_b64 exec, s[10:11]')
        A(f'buffer_store_dwordx4 v[{G}:{G+3}], v57, {WS}, s8 offen sc1')
        s.stamp(6,vST)
        s.stamp_flush(vST, 5)
        A('s_endpgm')

    def tile_consts(s):
        A=s.A
        A(f's_sub_u32 s{sTW}, s{sW}, 4')
        A(f's_mul_i32 s8, s{sTW}, 640\ns_add_u32 s8, s8, {L_ACT}')
        A(f'v_lshrrev_b32 v8, 5, v0\nv_and_b32 v9, 31, v0')
        A(f'v_mul_u32_u24 v10, {BSTR}, v8\nv_lshlrev_b32 v11, 3, v9\nv_add3_u32 v3, v10, v11, s8')
        A(f'v_and_b32 v10, 1, v0\nv_mul_u32_u24 v10, {BSTR}, v10\nv_bfe_u32 v11, v0, 1, 1\nv_lshlrev_b32 v11, 6, v11\nv_lshrrev_b32 v12, 4, v0\nv_lshlrev_b32 v12, 4, v12\nv_add3_u32 v7, v10, v11, v12')
        A(f'v_add_u32 v4, s8, v7')
        A(f'v_lshrrev_b32 v10, 4, v9\nv_lshlrev_b32 v10, 9, v10\nv_lshlrev_b32 v11, 8, v8\nv_and_b32 v12, 15, v0\nv_lshlrev_b32 v12, 4, v12\nv_add3_u32 v5, v10, v11, v12')
        A(f's_lshl_b32 s8, s{sTW}, 9\ns_add_u32 s8, s8, {L_PART}\nv_and_b32 v10, 7, v0\nv_lshlrev_b32 v10, 5, v10\nv_add_u32 v6, s8, v10')
    def wlane(s, dst, RS):
        A=s.A
        A(f'v_bfe_u32 v10, v0, 3, 1\nv_lshlrev_b32 v10, 5, v10\nv_lshrrev_b32 v11, 4, v0\nv_lshlrev_b32 v11, 3, v11\nv_add_u32 v10, v10, v11\nv_mov_b32 v11, {RS}\nv_mul_lo_u32 v10, v10, v11\nv_and_b32 v11, 7, v0\nv_lshlrev_b32 v11, 4, v11\nv_add_u32 v{dst}, v10, v11')
    def wloads(s, srd, vl, sbase, rowoffs, RS, raw, stmp=66):
        A=s.A
        for n,ro in enumerate(rowoffs):
            if ro==0: so=f's{sbase}'
            else:
                A(f's_add_u32 s{stmp}, s{sbase}, {ro*RS}'); so=f's{stmp}'
            A(f'buffer_load_dwordx4 v[{raw+4*n}:{raw+4*n+3}], v{vl}, {srd}, {so} offen nt')
    def startup_sync(s):
        A=s.A
        s.get_tag(); A('s_barrier')
    def ksplit_finish(s, R, pub_base_sgpr, final_all=False):
        pass

    def final_tile(s, O, G):
        A=s.A
        for r in range(4):
            A(f'v_add_f32 v{O+r}, v{O+r}, v{O+4+r}\nv_add_f32 v{O+8+r}, v{O+8+r}, v{O+12+r}')
        for r in range(4):
            A(f'v_add_f32 v{O+r}, v{O+r}, v{O+8+r}')
        A(f'v_cvt_pk_bf16_f32 v{G}, v{O}, v{O+1}\nv_cvt_pk_bf16_f32 v{G+1}, v{O+2}, v{O+3}')
    def part_read_list(s, O, va):
        return [f'ds_read_b128 v[{O+4*w}:{O+4*w+3}], v{va} offset:{512*w}' for w in range(4)]

    def ln_apply(s, X, sm, srs, C1, SH, t):
        A=s.A
        for r in range(4): A(f'v_sub_f32 v{X+r}, v{X+r}, v{sm}')
        s.round4(X,t)
        for r in range(4): A(f'v_mul_f32 v{X+r}, v{X+r}, v{srs}')
        s.round4(X,t)
    def mod_apply(s, X, C1, SH, t):
        A=s.A
        for r in range(4): A(f'v_mul_f32 v{X+r}, v{X+r}, v{C1+r}')
        s.round4(X,t)
        for r in range(4): A(f'v_add_f32 v{X+r}, v{X+r}, v{SH+r}')
        A(f'v_cvt_pk_bf16_f32 v{t}, v{X}, v{X+1}\nv_cvt_pk_bf16_f32 v{t+1}, v{X+2}, v{X+3}')
    def ln_final(s, mean, var, t):
        A=s.A
        s.round1(mean,t); s.round1(var,t)
        A(f'v_add_f32 v{var}, 0x3727c5ac, v{var}')
        s.round1(var,t)
        A(f'v_sqrt_f32 v{var}, v{var}')
        s.round1(var,t)
        A(f'v_rcp_f32 v{var}, v{var}')

    def tile(s):
        A=s.A
        RAW=64; T=128; ACC=32; R=16; ACT=24
        vST=255
        A('L_tile:')
        if s.prof: A(f'v_mov_b32 v{vST}, 0')
        s.stamp(0,vST)
        A(f's_cmp_lg_u32 s{sW}, 4\ns_cbranch_scc1 L_nz')
        A(f'v_lshlrev_b32 v8, 2, v0\nv_mov_b32 v9, 0\nds_write_b32 v8, v9 offset:{L_F}\ns_waitcnt lgkmcnt(0)')
        A('L_nz:')
        s.tile_consts()
        A(f's_cmp_lt_u32 s{sI}, 8\ns_cbranch_scc1 L_wq')
        A(f's_cmp_lt_u32 s{sI}, 16\ns_cbranch_scc1 L_wo')
        A(f's_cmp_lt_u32 s{sI}, 22\ns_cbranch_scc1 L_mod')
        A(f's_cmp_ge_u32 s{sI}, 30\ns_cbranch_scc1 L_none')
        A(f's_cmp_lt_u32 s{sI}, 28\ns_cbranch_scc1 L_ffn')
        A(f's_cmp_lt_u32 s{sG}, 4\ns_cbranch_scc1 L_ffn')
        A('L_none:')
        s.startup_sync()
        A('s_branch L_qpoll')

        A('L_wq:')
        s.srd(56,pX,2048); s.srd(48,pWQ,512*8192)
        A(f'v_lshrrev_b32 v8, 5, v0\nv_and_b32 v9, 31, v0\nv_lshlrev_b32 v10, 10, v8\nv_lshlrev_b32 v11, 3, v9\ns_lshl_b32 s8, s{sTW}, 8\nv_add3_u32 v12, v10, v11, s8\nv_lshlrev_b32 v11, 5, v9\nv_add_u32 v13, v10, v11')
        A(f'buffer_load_dwordx2 v[14:15], v12, {SC}, 0 offen\nbuffer_load_dwordx4 v[16:19], v13, {SC}, 0 offen\nbuffer_load_dwordx4 v[20:23], v13, {SC}, 0 offen offset:16')
        s.wlane(2,8192)
        A(f's_mul_i32 s65, s{sTW}, {128*8192}\ns_lshl_b32 s8, s{sG}, 10\ns_lshl_b32 s9, s{sI}, 7\ns_add_u32 s65, s65, s8\ns_add_u32 s65, s65, s9')
        s.wloads(SA,2,65,[64*blk+ii for blk in range(2) for ii in range(8)],8192,RAW)
        s.startup_sync()
        A('s_waitcnt vmcnt(16)')
        for k in range(8): s.unpack2(16+k, 32+2*k, 33+2*k)
        A('v_add_f32 v48, v32, v33')
        for k in range(2,16): A(f'v_add_f32 v48, v48, v{32+k}')
        s.rowsum16([48]); s.swap16([48],[49])
        A('v_mul_f32 v48, 0x3b000000, v48')
        for k in range(16): A(f'v_sub_f32 v{32+k}, v{32+k}, v48')
        A('v_mul_f32 v50, v32, v32')
        for k in range(1,16): A(f'v_fmac_f32 v50, v{32+k}, v{32+k}')
        s.rowsum16([50]); s.swap16([50],[49])
        A('v_mul_f32 v50, 0x3b000000, v50')
        s.ln_final(48,50,49)
        s.unpack2(14,8,9); s.unpack2(15,10,11)
        s.ln_apply(8,48,50,None,None,12)
        A('s_waitcnt vmcnt(0)')
        s.stamp(1,vST)
        s.transpose(RAW,T); s.transpose(RAW+32,T+32)
        A(f's_lshl_b32 s66, s{sTW}, 10\ns_add_u32 s66, s66, {hex(WS_MOD)}\ns_add_u32 s67, s66, {8*512}')
        s.poll([(16,5,'s66',0),(20,5,'s67',0)],12)
        s.stamp(2,vST)
        s.unpack2(16,24,25); s.unpack2(17,26,27)
        s.unpack2(20,28,29); s.unpack2(21,30,31)
        for r in range(4): A(f'v_add_f32 v{28+r}, 1.0, v{28+r}')
        s.round4(28,12)
        s.mod_apply(8,28,24,12)
        A('ds_write_b64 v3, v[12:13]\ns_waitcnt lgkmcnt(0)')
        s.mm(4,2,T,ACT-0,ACC,R) if False else s.mm(4,2,T,8,ACC,R)
        s.part_write(R,6)
        s.setflag(F_T1,8,9,swave=sTW)
        A(f's_cmp_lg_u32 s{sTW}, 0\ns_cbranch_scc1 L_wq_done')
        A(f'v_and_b32 v13, 31, v0\nv_lshlrev_b32 v13, 4, v13\nv_add_u32 v14, {L_PART}, v13')
        s.waitflags4(F_T1,8,extra=s.part_read_list(32,14))
        s.final_tile(32,16)
        A(f'v_mov_b32 v18, 0\nv_mov_b32 v19, s{sT}')
        A(f's_lshl_b32 s66, s{sG}, 12\ns_lshl_b32 s8, s{sI}, 9\ns_add_u32 s66, s66, s8\ns_add_u32 s66, s66, {hex(WS_Q)}')
        A('s_mov_b32 s10, -1\ns_mov_b32 s11, 0\ns_mov_b64 exec, s[10:11]')
        A(f'buffer_store_dwordx4 v[16:19], v13, {WS}, s66 offen sc1')
        A('s_mov_b64 exec, -1')
        s.stamp(3,vST)
        A('L_wq_done:')
        A('s_branch L_qpoll')

        A('L_mod:')
        s.srd(56,pC,2048); s.srd(48,pWM,512*6144)
        A(f's_lshl_b32 s65, s{sG}, 1\ns_add_u32 s65, s65, s{sI}\ns_sub_u32 s65, s65, 16')
        A(f's_lshl_b32 s8, s{sG}, 2\ns_add_u32 s8, s8, s{sI}\ns_sub_u32 s8, s8, 2')
        A(f's_cmp_lt_u32 s{sI}, 18\ns_cselect_b32 s65, s65, s8')
        A(f'v_lshrrev_b32 v8, 5, v0\nv_and_b32 v9, 31, v0\nv_lshlrev_b32 v10, 10, v8\nv_lshlrev_b32 v11, 3, v9\ns_lshl_b32 s8, s{sTW}, 8\nv_add3_u32 v12, v10, v11, s8')
        A(f'buffer_load_dwordx2 v[14:15], v12, {SC}, 0 offen')
        s.wlane(2,6144)
        A(f's_mul_i32 s67, s{sTW}, {128*6144}\ns_lshl_b32 s8, s65, 7\ns_add_u32 s67, s67, s8')
        s.wloads(SA,2,67,[64*blk+ii for blk in range(2) for ii in range(8)],6144,RAW)
        s.startup_sync()
        A('s_waitcnt vmcnt(16)')
        s.unpack2(14,8,9); s.unpack2(15,10,11)
        for r in range(4): A(f'v_mul_f32 v{16+r}, s{sLog2e}, v{8+r}')
        for r in range(4): A(f'v_exp_f32 v{16+r}, -v{16+r}')
        for r in range(4): A(f'v_add_f32 v{16+r}, 1.0, v{16+r}')
        for r in range(4): A(f'v_rcp_f32 v{16+r}, v{16+r}')
        for r in range(4): A(f'v_mul_f32 v{8+r}, v{8+r}, v{16+r}')
        A('v_cvt_pk_bf16_f32 v12, v8, v9\nv_cvt_pk_bf16_f32 v13, v10, v11')
        A('ds_write_b64 v3, v[12:13]')
        A('s_waitcnt vmcnt(0)')
        s.stamp(1,vST)
        s.transpose(RAW,T); s.transpose(RAW+32,T+32)
        A('s_waitcnt lgkmcnt(0)')
        s.mm(4,2,T,8,ACC,R)
        s.part_write(R,6)
        s.setflag(F_T1,8,9,swave=sTW)
        A(f's_cmp_lg_u32 s{sTW}, 0\ns_cbranch_scc1 L_mod_done')
        A(f'v_and_b32 v13, 31, v0\nv_lshlrev_b32 v13, 4, v13\nv_add_u32 v14, {L_PART}, v13')
        s.waitflags4(F_T1,8,extra=s.part_read_list(32,14))
        s.final_tile(32,16)
        A(f'v_mov_b32 v18, 0\nv_mov_b32 v19, s{sT}')
        A(f's_lshl_b32 s66, s65, 9\ns_add_u32 s66, s66, {hex(WS_MOD)}')
        A('s_mov_b32 s10, -1\ns_mov_b32 s11, 0\ns_mov_b64 exec, s[10:11]')
        A(f'buffer_store_dwordx4 v[16:19], v13, {WS}, s66 offen sc1')
        A('s_mov_b64 exec, -1')
        s.stamp(3,vST)
        A('L_mod_done:')
        A('s_branch L_qpoll')

        A('L_wo:')
        s.srd(48,pWO,4096*1024)
        A('v_bfe_u32 v10, v0, 4, 1\nv_lshlrev_b32 v10, 6, v10\nv_bfe_u32 v11, v0, 3, 1\nv_lshlrev_b32 v11, 1, v11\nv_lshrrev_b32 v12, 5, v0\nv_add3_u32 v10, v10, v11, v12\nv_lshlrev_b32 v10, 10, v10\nv_and_b32 v11, 7, v0\nv_lshlrev_b32 v11, 4, v11\nv_add_u32 v2, v10, v11')
        A(f's_sub_u32 s65, s{sI}, 8\ns_lshr_b32 s65, s65, 1\ns_and_b32 s69, s{sI}, 1\ns_lshl_b32 s68, s{sG}, 2\ns_add_u32 s68, s68, s65')
        A(f's_lshl_b32 s67, s68, 17\ns_lshl_b32 s8, s69, 9\ns_add_u32 s67, s67, s8\ns_lshl_b32 s8, s{sTW}, 7\ns_add_u32 s67, s67, s8')
        s.wloads(SA,2,67,[32*(ii>>2)+8*(ii&3)+4*blk for blk in range(2) for ii in range(8)],1024,RAW)
        s.startup_sync()
        A('s_waitcnt vmcnt(0)')
        s.stamp(1,vST)
        s.transpose(RAW,T); s.transpose(RAW+32,T+32)
        A('s_branch L_qpoll')

        A('L_ffn:')
        A(f's_sub_u32 s8, s{sI}, 22\ns_and_b32 s69, s8, 1\ns_lshr_b32 s8, s8, 1')
        A(f's_lshl_b32 s65, s{sG}, 2\ns_mul_i32 s9, s{sG}, 3\ns_add_u32 s9, s9, 4\ns_cmp_lt_u32 s{sG}, 4\ns_cselect_b32 s65, s65, s9\ns_add_u32 s65, s65, s8')
        A(f's_cmp_eq_u32 s69, 0\ns_cselect_b32 s8, s{pW1}, s{pW3}\ns_cselect_b32 s9, s{pW1+1}, s{pW3+1}')
        A(f's_mov_b32 s48, s8\ns_mov_b32 s49, s9\ns_mov_b32 s50, {512*3584}\ns_mov_b32 s51, 0x20000')
        s.srd(52,pW2,1792*1024)
        s.wlane(2,3584)
        A(f's_mul_i32 s67, s{sTW}, {128*3584}\ns_lshl_b32 s8, s65, 7\ns_add_u32 s67, s67, s8')
        s.wloads(SA,2,67,[64*blk+ii for blk in range(2) for ii in range(8)],3584,RAW)
        s.wlane(2,1024)
        A(f's_lshl_b32 s67, s65, 16\ns_lshl_b32 s8, s69, 9\ns_add_u32 s67, s67, s8\ns_lshl_b32 s8, s{sTW}, 7\ns_add_u32 s67, s67, s8')
        s.wloads(SB,2,67,list(range(8)),1024,192)
        s.startup_sync()
        A('s_waitcnt vmcnt(8)')
        s.transpose(RAW,T); s.transpose(RAW+32,T+32)
        A('s_waitcnt vmcnt(0)')
        s.stamp(1,vST)
        s.transpose(192,RAW)

        A('L_qpoll:')
        A(f's_cmp_lg_u32 s{sTW}, 0\ns_cbranch_scc1 L_qdone')
        A(f'v_lshrrev_b32 v8, 4, v0\nv_lshlrev_b32 v8, 9, v8\nv_and_b32 v9, 15, v0\nv_lshlrev_b32 v9, 4, v9\nv_add_u32 v8, v8, v9')
        A(f's_lshr_b32 s8, s{sI}, 4\ns_lshl_b32 s8, s8, 8\ns_lshl_b32 s66, s{sG}, 12\ns_add_u32 s66, s66, s8\ns_add_u32 s66, s66, {hex(WS_Q)}')
        s.poll([(16,8,'s66',0),(20,8,'s66',2048)],12)
        A(f'v_lshlrev_b32 v9, 3, v0\nds_write_b64 v9, v[16:17] offset:{L_Q}\nds_write_b64 v9, v[20:21] offset:{L_Q+512}')
        s.setflag(F_Q,8,10)
        s.stamp(4,vST)
        A('L_qdone:')
        A(f's_cmp_lt_u32 s{sI}, 8\ns_cbranch_scc1 L_b1')
        A(f's_cmp_lt_u32 s{sI}, 16\ns_cbranch_scc1 L_wo2')
        A(f's_cmp_lt_u32 s{sI}, 22\ns_cbranch_scc1 L_b1')
        A(f's_cmp_ge_u32 s{sI}, 30\ns_cbranch_scc1 L_b1')
        A(f's_cmp_lt_u32 s{sI}, 28\ns_cbranch_scc1 L_ffn2')
        A(f's_cmp_lt_u32 s{sG}, 4\ns_cbranch_scc1 L_ffn2')
        A('s_branch L_tdone')

        A('L_wo2:')
        A(f's_and_b32 s70, s{sTW}, 1\ns_lshr_b32 s71, s{sTW}, 1')
        A(f's_lshl_b32 s72, s68, 1\ns_add_u32 s72, s72, s70\ns_mul_i32 s72, s72, {16*576}\ns_add_u32 s72, s72, {hex(WS_AS)}')
        A(f's_lshl_b32 s8, s71, 8\ns_add_u32 s73, s72, s8\ns_add_u32 s74, s73, {2*2304}')
        A('v_lshrrev_b32 v8, 4, v0\nv_and_b32 v9, 15, v0\nv_mul_u32_u24 v10, 576, v8\nv_lshlrev_b32 v11, 4, v9\nv_add_u32 v12, v10, v11')
        A('v_and_b32 v11, 3, v0\nv_mul_u32_u24 v11, 2304, v11\nv_add3_u32 v13, v10, v11, 0\nv_add_u32 v13, 512, v13')
        A(f's_mul_i32 s8, s70, {BSTR}\ns_lshl_b32 s9, s71, 7\ns_add_u32 s8, s8, s9\ns_add_u32 s8, s8, {L_OACT}\nv_lshlrev_b32 v14, 3, v9\nv_add_u32 v14, s8, v14')
        A(f'v_add_u32 v15, {L_OACT}, v7')
        A(f'v_and_b32 v2, 7, v0\nv_mul_u32_u24 v2, 48, v2\ns_lshl_b32 s8, s69, 5\ns_lshl_b32 s9, s{sTW}, 3\ns_add_u32 s8, s8, s9\ns_mul_i32 s8, s8, 48\ns_mul_i32 s75, s68, 3072\ns_add_u32 s75, s75, s8\ns_add_u32 s75, s75, {hex(WS_AO)}')
        s.poll([(32,12,'s73',0),(36,12,'s73',2304),(40,12,'s74',0),(44,12,'s74',2304),(48,13,'s72',0)],8)
        s.stamp(5,vST)
        A('v_mov_b32 v50, v48')
        A('v_max_f32_dpp v50, v50, v50 quad_perm:[1,0,3,2] row_mask:0xf bank_mask:0xf\nv_max_f32_dpp v50, v50, v50 quad_perm:[2,3,0,1] row_mask:0xf bank_mask:0xf')
        s.swap16([50],[51],'v_max_f32'); s.swap32([50],[51],'v_max_f32')
        A(f'v_sub_f32 v48, v48, v50\nv_mul_f32 v48, s{sLog2e}, v48\nv_exp_f32 v48, v48')
        A('v_mul_f32 v49, v48, v49')
        A('v_add_f32_dpp v49, v49, v49 quad_perm:[1,0,3,2] row_mask:0xf bank_mask:0xf\nv_add_f32_dpp v49, v49, v49 quad_perm:[2,3,0,1] row_mask:0xf bank_mask:0xf')
        s.swap16([49],[51]); s.swap32([49],[51])
        A('v_rcp_f32 v49, v49\nv_mul_f32 v48, v48, v49')
        for q in range(4):
            s.unpack2(32+4*q, 16, 17); s.unpack2(33+4*q, 18, 19)
            for e in range(4):
                op='v_mul_f32_dpp' if q==0 else 'v_fmac_f32_dpp'
                A(f'{op} v{20+e}, v48, v{16+e} quad_perm:[{q},{q},{q},{q}] row_mask:0xf bank_mask:0xf')
        s.swap16([20,21,22,23],[16,17,18,19]); s.swap32([20,21,22,23],[16,17,18,19])
        A('v_cvt_pk_bf16_f32 v16, v20, v21\nv_cvt_pk_bf16_f32 v17, v22, v23')
        A('s_mov_b64 exec, 0xffff\nds_write_b64 v14, v[16:17]\ns_mov_b64 exec, -1')
        s.setflag(F_T2,8,9,swave=sTW)
        s.waitflags4(F_T2,8)
        s.mm(15,2,T,8,ACC,R)
        s.publishR(R,32,2,'s75')
        s.stamp(6,vST)
        A('s_branch L_tdone')

        A('L_b1:')
        A(f's_cmp_lg_u32 s{sTW}, 1\ns_cbranch_scc1 L_tdone')
        A(f's_mov_b32 s65, s{sI}\ns_sub_u32 s8, s{sI}, 8\ns_cmp_ge_u32 s{sI}, 16\ns_cselect_b32 s65, s8, s65\ns_sub_u32 s8, s{sI}, 16\ns_cmp_ge_u32 s{sI}, 30\ns_cselect_b32 s65, s8, s65')
        s.srd(56,pX,2048); s.srd(60,pOUT,2048)
        A('v_and_b32 v8, 3, v0\nv_bfe_u32 v9, v0, 2, 2\nv_lshrrev_b32 v10, 4, v0\nv_lshrrev_b32 v11, 5, v0\nv_bfe_u32 v12, v0, 4, 1')
        A('v_lshlrev_b32 v13, 10, v11\nv_lshlrev_b32 v14, 4, v8\nv_lshlrev_b32 v15, 3, v12\nv_add3_u32 v13, v13, v14, v15\ns_lshl_b32 s8, s65, 6\nv_add_u32 v2, s8, v13')
        A(f'buffer_load_dwordx2 v[16:17], v2, {SC}, 0 offen')
        A('v_lshlrev_b32 v13, 8, v11\nv_lshlrev_b32 v14, 5, v8\nv_lshlrev_b32 v15, 4, v12\nv_add3_u32 v13, v13, v14, v15\ns_and_b32 s8, s65, 1\ns_lshl_b32 s8, s8, 7\nv_add_u32 v3, s8, v13')
        A(f's_lshr_b32 s8, s65, 1\ns_lshl_b32 s8, s8, 9\ns_add_u32 s66, s8, {hex(WS_MOD+16*512)}\ns_add_u32 s67, s66, {24*512}')
        A('v_lshlrev_b32 v13, 11, v11\nv_lshlrev_b32 v14, 5, v8\nv_lshlrev_b32 v15, 4, v12\nv_add3_u32 v13, v13, v14, v15\ns_lshl_b32 s8, s65, 7\nv_add_u32 v4, s8, v13')
        A(f's_lshl_b32 s68, s{sG}, 12\ns_add_u32 s68, s68, {hex(WS_X1)}')
        A('v_lshlrev_b32 v13, 8, v11\ns_lshl_b32 s8, s65, 4\nv_add_u32 v5, s8, v13')
        A(f's_lshl_b32 s69, s{sG}, 9\ns_add_u32 s69, s69, {hex(WS_XS)}')
        A('v_lshlrev_b32 v13, 2, v10\nv_add_u32 v13, v13, v9\nv_mul_u32_u24 v13, 3072, v13\nv_mul_u32_u24 v14, 48, v8\ns_mul_i32 s8, s65, 192\nv_add3_u32 v6, v13, v14, s8')
        A(f's_mov_b32 s70, {hex(WS_AO)}\ns_mov_b32 s71, {hex(WS_AO+16*3072)}\ns_mov_b32 s72, {hex(WS_YO)}\ns_mov_b32 s73, {hex(WS_YO+16*3072)}')
        SEL=64
        A('v_bfe_u32 v13, v0, 1, 3\nv_and_b32 v14, 1, v0\nv_mov_b32 v15, 0x3f80\nv_mov_b32 v7, 0x3f800000\nv_cmp_eq_u32 vcc, 1, v14\nv_cndmask_b32 v15, v15, v7, vcc')
        for kind in range(3):
            for pp in range(4):
                x=3*kind+pp
                d=SEL+4*kind+pp
                if pp==3 or x>7: A(f'v_mov_b32 v{d}, 0')
                else: A(f'v_cmp_eq_u32 vcc, {x}, v13\nv_cndmask_b32 v{d}, 0, v15, vcc')
        s.poll([(20,3,'s66',0),(24,3,'s67',0)],13)
        s.unpack2(16,28,29); s.unpack2(17,30,31)
        s.unpack2(20,32,33); s.unpack2(21,34,35)
        s.unpack2(24,36,37); s.unpack2(25,38,39)
        s.stamp(5,vST)
        GA=80
        def gather_reduce(b0,b1,second_mask):
            lo=[(GA+4*k,6,b0,16*k) for k in range(3)]
            hi=[(GA+12+4*k,6,b1,16*k) for k in range(3)]
            if second_mask:
                for k in range(12): A(f'v_mov_b32 v{GA+12+k}, 0')
                s.poll(lo,13)
                A('s_mov_b32 s10, -1\ns_mov_b32 s11, 0xffff\ns_mov_b64 exec, s[10:11]')
                s.poll(hi,13)
                A('s_mov_b64 exec, -1')
            else:
                s.poll(lo+hi,13)
            for k in range(6): A(f'v_mov_b32 v{GA+4*k+3}, 0')
            for k in range(6):
                c='0' if k==0 else 'v[40:43]'
                A(f'v_mfma_f32_16x16x32_bf16 v[40:43], v[{SEL+4*(k%3)}:{SEL+4*(k%3)+3}], v[{GA+4*k}:{GA+4*k+3}], {c}')
            for sh in (4,8):
                for r in range(4):
                    A(f'v_add_f32_dpp v{40+r}, v{40+r}, v{40+r} row_ror:{sh} row_mask:0xf bank_mask:0xf')
        gather_reduce('s70','s71',False)
        s.stamp(6,vST)
        s.round4(40,13)
        for r in range(4): A(f'v_mul_f32 v{40+r}, v{32+r}, v{40+r}')
        s.round4(40,13)
        for r in range(4): A(f'v_add_f32 v{40+r}, v{28+r}, v{40+r}')
        A('v_cvt_pk_bf16_f32 v44, v40, v41\nv_cvt_pk_bf16_f32 v45, v42, v43')
        A(f'v_mov_b32 v46, 0\nv_mov_b32 v47, s{sT}')
        A('s_mov_b32 s10, 0x000f000f\ns_mov_b32 s11, 0x000f000f\ns_mov_b64 exec, s[10:11]')
        A(f'buffer_store_dwordx4 v[44:47], v4, {WS}, s68 offen sc1')
        A('s_mov_b64 exec, -1')
        s.unpack2(44,28,29); s.unpack2(45,30,31)
        A('v_add_f32 v48, v28, v29\nv_add_f32 v49, v30, v31\nv_add_f32 v48, v48, v49')
        A('v_mul_f32 v49, v28, v28\nv_fmac_f32 v49, v29, v29\nv_fmac_f32 v49, v30, v30\nv_fmac_f32 v49, v31, v31')
        for qp in ('[1,0,3,2]','[2,3,0,1]'):
            for r in (48,49): A(f'v_add_f32_dpp v{r}, v{r}, v{r} quad_perm:{qp} row_mask:0xf bank_mask:0xf')
        s.swap16([48,49],[52,53])
        A(f'v_mov_b32 v50, 0\nv_mov_b32 v51, s{sT}')
        A('s_mov_b32 s10, 1\ns_mov_b32 s11, 1\ns_mov_b64 exec, s[10:11]')
        A(f'buffer_store_dwordx4 v[48:51], v5, {WS}, s69 offen sc1')
        A('s_mov_b64 exec, -1')
        s.stamp(7,vST)
        A(f's_and_b32 s8, s65, 7\ns_cmp_lg_u32 s8, s{sG}\ns_cbranch_scc1 L_tdone')
        gather_reduce('s72','s73',True)
        s.stamp(8,vST)
        s.round4(40,13)
        for r in range(4): A(f'v_mul_f32 v{40+r}, v{36+r}, v{40+r}')
        s.round4(40,13)
        for r in range(4): A(f'v_add_f32 v{40+r}, v{28+r}, v{40+r}')
        A('v_cvt_pk_bf16_f32 v44, v40, v41\nv_cvt_pk_bf16_f32 v45, v42, v43')
        A('s_mov_b32 s10, 0x000f000f\ns_mov_b32 s11, 0x000f000f\ns_mov_b64 exec, s[10:11]')
        A(f'buffer_store_dwordx2 v[44:45], v2, {SD}, 0 offen')
        A('s_mov_b64 exec, -1')
        A('s_cmp_lg_u32 s65, 0\ns_cbranch_scc1 L_tdone')
        A(f'v_mov_b32 v44, s{sT}\nv_mov_b32 v45, 0\ns_mov_b64 exec, 1\nbuffer_store_dword v44, v45, {WS}, 0 offen sc1\ns_mov_b64 exec, -1')
        s.stamp(9,vST)
        A('s_branch L_tdone')

        A('L_ffn2:')
        A(f's_lshl_b32 s66, s{sTW}, 10\ns_add_u32 s66, s66, {hex(WS_MOD+24*512)}\ns_add_u32 s67, s66, {8*512}')
        s.poll([(16,5,'s66',0),(20,5,'s67',0)],12)
        s.unpack2(16,24,25); s.unpack2(17,26,27)
        s.unpack2(20,28,29); s.unpack2(21,30,31)
        for r in range(4): A(f'v_add_f32 v{28+r}, 1.0, v{28+r}')
        s.round4(28,12)
        A(f'v_lshrrev_b32 v8, 5, v0\nv_and_b32 v9, 31, v0\nv_lshlrev_b32 v10, 11, v8\nv_lshlrev_b32 v11, 4, v9\ns_lshl_b32 s8, s{sTW}, 9\nv_add3_u32 v13, v10, v11, s8')
        A('v_lshlrev_b32 v10, 8, v8\nv_and_b32 v11, 15, v0\nv_lshlrev_b32 v11, 4, v11\nv_add_u32 v14, v10, v11')
        A(f's_lshl_b32 s70, s{sG}, 12\ns_add_u32 s70, s70, {hex(WS_X1)}\ns_lshl_b32 s71, s{sG}, 9\ns_add_u32 s71, s71, {hex(WS_XS)}')
        A(f's_lshl_b32 s72, s65, 1\ns_add_u32 s72, s72, s69\ns_xor_b32 s73, s72, 1\ns_lshl_b32 s72, s72, 9\ns_lshl_b32 s73, s73, 9\ns_add_u32 s72, s72, {hex(WS_GU)}\ns_add_u32 s73, s73, {hex(WS_GU)}')
        A(f'v_and_b32 v96, 31, v0\nv_lshlrev_b32 v96, 4, v96\nv_add_u32 v2, {L_PART}, v96')
        A(f's_lshl_b32 s8, s{sTW}, 8\ns_add_u32 s8, s8, {L_H2}\nv_lshrrev_b32 v97, 1, v96\nv_add_u32 v97, s8, v97')
        A('v_and_b32 v10, 1, v0\nv_lshlrev_b32 v10, 7, v10\nv_bfe_u32 v11, v0, 1, 1\nv_lshlrev_b32 v11, 6, v11\nv_lshrrev_b32 v12, 4, v0\nv_lshlrev_b32 v12, 4, v12\nv_add3_u32 v98, v10, v11, v12\nv_add_u32 v98, s8, v98')
        A(f'v_and_b32 v99, 7, v0\nv_mul_u32_u24 v99, 48, v99\ns_lshl_b32 s8, s69, 5\ns_lshl_b32 s9, s{sTW}, 3\ns_add_u32 s8, s8, s9\ns_mul_i32 s8, s8, 48\ns_mul_i32 s75, s65, 3072\ns_add_u32 s75, s75, s8\ns_add_u32 s75, s75, {hex(WS_YO)}')
        s.stamp(5,vST)
        s.poll([(16,13,'s70',0),(20,14,'s71',0)],10)
        s.stamp(6,vST)
        s.rowsum16([20,21])
        A('v_mul_f32 v20, 0x3b000000, v20\nv_mul_f32 v21, 0x3b000000, v21\nv_fma_f32 v21, -v20, v20, v21\nv_max_f32 v21, 0, v21')
        s.ln_final(20,21,12)
        s.unpack2(16,8,9); s.unpack2(17,10,11)
        s.ln_apply(8,20,21,None,None,12)
        s.mod_apply(8,28,24,12)
        A('ds_write_b64 v3, v[12:13]\ns_waitcnt lgkmcnt(0)')
        s.mm(4,2,T,8,ACC,R)
        s.part_write(R,6)
        s.setflag(F_T1,8,9,swave=sTW)
        s.waitflags4(F_T1,8,extra=s.part_read_list(32,2))
        s.final_tile(32,16)
        A(f'v_mov_b32 v18, 0\nv_mov_b32 v19, s{sT}')
        lab=A.label('nopub')
        A(f's_cmp_lg_u32 s{sTW}, 0\ns_cbranch_scc1 {lab}')
        A('s_mov_b32 s10, -1\ns_mov_b32 s11, 0\ns_mov_b64 exec, s[10:11]')
        A(f'buffer_store_dwordx4 v[16:19], v96, {WS}, s72 offen sc1')
        A('s_mov_b64 exec, -1')
        A(f'{lab}:')
        s.stamp(7,vST)
        s.poll([(20,96,'s73',0)],12)
        s.stamp(8,vST)
        A('s_cmp_eq_u32 s69, 0\ns_cselect_b64 s[10:11], -1, 0')
        A('v_cndmask_b32 v24, v20, v16, s[10:11]\nv_cndmask_b32 v25, v21, v17, s[10:11]\nv_cndmask_b32 v26, v16, v20, s[10:11]\nv_cndmask_b32 v27, v17, v21, s[10:11]')
        s.unpack2(24,8,9); s.unpack2(25,10,11)
        s.unpack2(26,28,29); s.unpack2(27,30,31)
        for r in range(4): A(f'v_mul_f32 v{16+r}, s{sLog2e}, v{8+r}')
        for r in range(4): A(f'v_exp_f32 v{16+r}, -v{16+r}')
        for r in range(4): A(f'v_add_f32 v{16+r}, 1.0, v{16+r}')
        for r in range(4): A(f'v_rcp_f32 v{16+r}, v{16+r}')
        for r in range(4): A(f'v_mul_f32 v{8+r}, v{8+r}, v{16+r}')
        s.round4(8,12)
        for r in range(4): A(f'v_mul_f32 v{8+r}, v{8+r}, v{28+r}')
        A('v_cvt_pk_bf16_f32 v12, v8, v9\nv_cvt_pk_bf16_f32 v13, v10, v11')
        A('ds_write_b64 v97, v[12:13]\ns_waitcnt lgkmcnt(0)')
        s.mm(98,1,RAW,8,ACC,R)
        s.publishR(R,32,99,'s75')
        s.stamp(9,vST)
        A('L_tdone:')
        s.stamp_flush(vST, 8)
        A('s_endpgm')

    def build(s):
        A=s.A
        s.prologue(); s.kv(); s.tile()
        A('L_exit:\ns_endpgm')
        body,nn=fix_hazards(A.L)
        hdr=[f'; @launch grid=(256,1,1) block=(512,1,1) lds={L_SIZE}',
             '.amdgcn_target "amdgcn-amd-amdhsa--gfx950"','.text',f'.globl {NAME}_kernel','.p2align 8',f'.type {NAME}_kernel,@function',f'{NAME}_kernel:']
        ftr=f'''.section .rodata,"a"
.p2align 6
.amdhsa_kernel {NAME}_kernel
  .amdhsa_next_free_vgpr 256
  .amdhsa_next_free_sgpr 102
  .amdhsa_accum_offset 256
  .amdhsa_group_segment_fixed_size 0
  .amdhsa_kernarg_size 112
  .amdhsa_user_sgpr_count 2
  .amdhsa_user_sgpr_kernarg_segment_ptr 1
  .amdhsa_system_sgpr_workgroup_id_x 1
.end_amdhsa_kernel'''
        return '\n'.join(hdr+body)+'\n'+ftr+'\n', nn

if __name__=='__main__':
    import argparse
    ap=argparse.ArgumentParser()
    ap.add_argument('-o',default='k1.s'); ap.add_argument('--prof',action='store_true'); ap.add_argument('--thr',type=int,default=4)
    a=ap.parse_args()
    k=K(prof=a.prof,thr=a.thr)
    txt,nn=k.build()
    open(a.o,'w').write(txt)
    print('written',a.o,'lines',txt.count('\n'),'nop states',nn)
```

```python
import sys
sys.path.insert(0,'gen')
from asmlib import *
NAME='adaLN_cond__sliding_block_cached__glu_gated_swiglu__decode'

WS_MOD  = 0x1000
WS_Q    = 0x8000
WS_AS   = 0x10000
WS_AO   = 0xA0000
WS_X1   = 0xB8000
WS_XS   = 0xC0000
WS_XT   = 0xC1000
WS_MF   = 0xC4000
WS_YO   = 0xC8000
WS_PROF = 0x100000
WS_SIZE = 0x180000
L_Q=0x0; L_F=0x400; L_KM=0x500; L_KL=0x540; L_KO=0x600; L_ACT=0x2A00; L_PART=0x3400; L_OACT=0x3C00; L_H2=0x3E80; L_SIZE=0x4400
F_Q=0; F_M=4; F_O=8; F_T1=12; F_T2=16; F_KI=20; F_K=24; F_G=28
BSTR=384
sW=3; sG=4; sI=5; sE=6; sT=7
pX=16; pK=18; pV=20; pWQ=22; pWO=24; pW1=28; pW3=30; pW2=32; pC=34; pWM=36; pOUT=38; pDBG=40; pWS=42
WS='s[44:47]'; SA='s[48:51]'; SB='s[52:55]'; SC='s[56:59]'; SD='s[60:63]'
sTW=64; sSelLo=80; sSelHi=81; sHiMask=82; sFast=83; sCNT=84; sLog2e=85; sXCC=90
LOG2E='0x3fb8aa3b'
I_MF=4; I_WQ=12; I_WO=20; I_MR=24; I_FFN=31

DEF=dict(thr=4, thr_wq=8, pre_wq=0, thr_wo=4, thr_w=4, gate_wo='start', gate_mr='start', gate_ffn='KI', fast=1, gate_mf=1)

class K:
    def __init__(s, prof=False, opts=None):
        s.A=Asm(); s.prof=prof; s.o=dict(DEF); s.o.update(opts or {})
    def srd(s, base, ptr, size):
        A=s.A
        A(f's_mov_b32 s{base}, s{ptr}\ns_mov_b32 s{base+1}, s{ptr+1}\ns_mov_b32 s{base+2}, {hex(size)}\ns_mov_b32 s{base+3}, 0x20000')
    def stamp(s, idx, vst):
        if not s.prof: return
        s.A(f's_memrealtime s[86:87]\ns_waitcnt lgkmcnt(0)\nv_writelane_b32 v{vst}, s86, {idx}')
    def stamp_flush(s, vst, vtmp):
        if not s.prof: return
        A=s.A
        A(f's_mov_b64 exec, -1')
        A(f's_lshl_b32 s88, s2, 3\ns_add_u32 s88, s88, s{sW}\ns_lshl_b32 s88, s88, 8\ns_add_u32 s88, s88, {hex(WS_PROF)}')
        A(f'v_mbcnt_lo_u32_b32 v{vtmp}, -1, 0\nv_mbcnt_hi_u32_b32 v{vtmp}, -1, v{vtmp}\nv_lshlrev_b32 v{vtmp}, 2, v{vtmp}')
        A(f'buffer_store_dword v{vst}, v{vtmp}, {WS}, s88 offen')
    def poll(s, loads, tmp, f4=(), pre=None, masked=()):
        A=s.A; lp=A.label('poll'); dn=A.label('pdone')
        A(f'{lp}:')
        for e in (pre or []): A(e)
        for (d,va,so,imm) in list(loads)+list(f4):
            A(f'buffer_load_dwordx4 v[{d}:{d+3}], v{va}, {WS}, {so} offen offset:{imm} sc1')
        if masked:
            A('s_mov_b32 exec_hi, 0')
            for (d,va,so,imm) in masked:
                A(f'buffer_load_dwordx4 v[{d}:{d+3}], v{va}, {WS}, {so} offen offset:{imm} sc1')
            A('s_mov_b32 exec_hi, -1')
        A('s_waitcnt vmcnt(0)')
        first=True
        for (d,va,so,imm) in list(loads)+list(masked):
            if first: A(f'v_xor_b32 v{tmp}, s{sT}, v{d+3}'); first=False
            else:
                A(f'v_xor_b32 v{tmp+1}, s{sT}, v{d+3}\nv_or_b32 v{tmp}, v{tmp}, v{tmp+1}')
        for (d,va,so,imm) in f4:
            A(f'v_perm_b32 v{tmp+1}, v{d+1}, v{d}, s{s.sF4a}\nv_perm_b32 v{tmp+2}, v{d+3}, v{d+2}, s{s.sF4b}')
            A(f'v_or_b32 v{tmp+1}, v{tmp+1}, v{tmp+2}')
            if first: A(f'v_xor_b32 v{tmp}, s{sT}, v{tmp+1}'); first=False
            else: A(f'v_xor_b32 v{tmp+1}, s{sT}, v{tmp+1}\nv_or_b32 v{tmp}, v{tmp}, v{tmp+1}')
        A(f'v_cmp_ne_u32 vcc, 0, v{tmp}')
        A(f's_cbranch_vccz {dn}')
        A(f's_sub_u32 s{sCNT}, s{sCNT}, 1\ns_cbranch_scc0 {lp}\ns_mov_b32 s{sCNT}, 0')
        A(f'{dn}:')
    def setflag(s, word, vaddr_tmp, vone, swave=None, val='1'):
        A=s.A
        if swave is None:
            A(f'v_mov_b32 v{vaddr_tmp}, {L_F+4*word}')
        else:
            A(f's_lshl_b32 s8, s{swave}, 2\ns_add_u32 s8, s8, {L_F+4*word}\nv_mov_b32 v{vaddr_tmp}, s8')
        A(f'v_mov_b32 v{vone}, {val}')
        A(f's_mov_b64 s[10:11], exec\ns_mov_b64 exec, 1')
        A(f'ds_write_b32 v{vaddr_tmp}, v{vone}')
        A(f's_mov_b64 exec, s[10:11]')
    def waitflags4(s, word, vt, extra=None):
        A=s.A; lp=A.label('lw'); dn=A.label('lwd')
        A(f'v_mov_b32 v{vt+4}, {L_F+4*word}')
        A(f'{lp}:')
        A(f'ds_read_b128 v[{vt}:{vt+3}], v{vt+4}')
        for e in (extra or []): A(e)
        A('s_waitcnt lgkmcnt(0)')
        A(f'v_min3_u32 v{vt}, v{vt}, v{vt+1}, v{vt+2}\nv_min_u32 v{vt}, v{vt}, v{vt+3}')
        A(f'v_cmp_ne_u32 vcc, 0, v{vt}')
        A(f's_cbranch_vccnz {dn}')
        A(f's_sub_u32 s{sCNT}, s{sCNT}, 1\ns_cbranch_scc0 {lp}\ns_mov_b32 s{sCNT}, 0')
        A(f'{dn}:')
    def waitflag1(s, word, vt):
        A=s.A; lp=A.label('lw'); dn=A.label('lwd')
        A(f'v_mov_b32 v{vt+1}, {L_F+4*word}')
        A(f'{lp}:')
        A(f'ds_read_b32 v{vt}, v{vt+1}')
        A('s_waitcnt lgkmcnt(0)')
        A(f'v_cmp_ne_u32 vcc, 0, v{vt}')
        A(f's_cbranch_vccnz {dn}')
        A(f's_sub_u32 s{sCNT}, s{sCNT}, 1\ns_cbranch_scc0 {lp}\ns_mov_b32 s{sCNT}, 0')
        A(f'{dn}:')
    def fast_from_flag(s, vt):
        s.A(f'v_readfirstlane_b32 s{sFast}, v{vt}\ns_lshr_b32 s{sFast}, s{sFast}, 1')
    def gstore(s, text):
        A=s.A
        if not s.o['fast']:
            A(text+' sc1'); return
        l1=A.label('slow'); l2=A.label('sd')
        A(f's_cmp_eq_u32 s{sFast}, 0\ns_cbranch_scc1 {l1}')
        A(text); A(f's_branch {l2}\n{l1}:'); A(text+' sc1'); A(f'{l2}:')
    def unpack2(s, src, lo, hi):
        s.A(f'v_lshlrev_b32 v{lo}, 16, v{src}\nv_and_b32 v{hi}, s{sHiMask}, v{src}')
    def round4(s, v, t):
        A=s.A
        A(f'v_cvt_pk_bf16_f32 v{t}, v{v}, v{v+1}\nv_cvt_pk_bf16_f32 v{t+1}, v{v+2}, v{v+3}')
        s.unpack2(t, v, v+1); s.unpack2(t+1, v+2, v+3)
    def round1(s, v, t):
        A=s.A
        A(f'v_cvt_pk_bf16_f32 v{t}, v{v}, v{v}\nv_lshlrev_b32 v{v}, 16, v{t}')
    def transpose(s, raw, dst):
        A=s.A
        for jj in range(4):
            for pp in range(4):
                a=raw+(2*pp)*4+jj; b=raw+(2*pp+1)*4+jj
                A(f'v_perm_b32 v{dst+(2*jj)*4+pp}, v{b}, v{a}, s{sSelLo}')
                A(f'v_perm_b32 v{dst+(2*jj+1)*4+pp}, v{b}, v{a}, s{sSelHi}')
    def rowsum16(s, regs, op='v_add_f32'):
        A=s.A
        for sh in (8,4,2,1):
            for r in regs:
                A(f'{op}_dpp v{r}, v{r}, v{r} row_ror:{sh} row_mask:0xf bank_mask:0xf')
    def swap16(s, regs, tmps, op='v_add_f32'):
        A=s.A
        for r,t in zip(regs,tmps): A(f'v_mov_b32 v{t}, v{r}')
        for r,t in zip(regs,tmps): A(f'v_permlane16_swap_b32 v{r}, v{t}')
        for r,t in zip(regs,tmps): A(f'{op} v{r}, v{r}, v{t}')
    def swap32(s, regs, tmps, op='v_add_f32'):
        A=s.A
        for r,t in zip(regs,tmps): A(f'v_mov_b32 v{t}, v{r}')
        for r,t in zip(regs,tmps): A(f'v_permlane32_swap_b32 v{r}, v{t}')
        for r,t in zip(regs,tmps): A(f'{op} v{r}, v{r}, v{t}')
    def mm(s, actaddr, nblk, T, act, acc, R):
        A=s.A
        for blk in range(nblk):
            A(f'ds_read_b128 v[{act+4*blk}:{act+4*blk+3}], v{actaddr} offset:{128*blk}')
        for blk in range(nblk):
            A(f's_waitcnt lgkmcnt({nblk-1-blk})')
            for j in range(8):
                c = '0' if blk==0 else f'v[{acc+4*j}:{acc+4*j+3}]'
                A(f'v_mfma_f32_16x16x32_bf16 v[{acc+4*j}:{acc+4*j+3}], v[{act+4*blk}:{act+4*blk+3}], v[{T+32*blk+4*j}:{T+32*blk+4*j+3}], {c}')
        if R is None: return
        for j in range(8):
            for b in range(2):
                A(f'v_add_f32_dpp v{R+8*b+j}, v{acc+4*j+2+b}, v{acc+4*j+b} row_shl:8 row_mask:0xf bank_mask:0xf')
    def part_write(s, R, vaddr):
        A=s.A
        A('s_mov_b64 exec, 0xff')
        A(f'ds_write_b128 v{vaddr}, v[{R}:{R+3}]\nds_write_b128 v{vaddr}, v[{R+4}:{R+7}] offset:16')
        A(f'ds_write_b128 v{vaddr}, v[{R+8}:{R+11}] offset:256\nds_write_b128 v{vaddr}, v[{R+12}:{R+15}] offset:272')
        A('s_mov_b64 exec, -1')
    def publishR(s, reg, G, vaddr, soff, mask):
        A=s.A
        idx=[(0,0),(0,2),(0,4),(0,6),(1,0),(1,2),(1,4),(1,6)]
        slots=[G+0,G+1,G+2,G+4,G+5,G+6,G+8,G+9]
        A(f'v_mov_b32 v{G+10}, 0')
        A(f'v_mov_b32 v{G+3}, s{sT}\nv_mov_b32 v{G+7}, s{sT}\nv_mov_b32 v{G+11}, s{sT}')
        for (b,j),d in zip(idx,slots):
            A(f'v_cvt_pk_bf16_f32 v{d}, v{reg(b,j)}, v{reg(b,j+1)}')
        A(f's_mov_b64 exec, {mask}')
        for k in range(3):
            A(f'buffer_store_dwordx4 v[{G+4*k}:{G+4*k+3}], v{vaddr}, {WS}, {soff} offen offset:{16*k} sc1')
        A('s_mov_b64 exec, -1')
    def get_tag(s):
        s.A(f's_waitcnt lgkmcnt(0)\ns_mul_i32 s{sT}, s{sE}, 1664525\ns_add_u32 s{sT}, s{sT}, 1013904223')

    def prologue(s):
        A=s.A
        A('s_cmp_ge_u32 s2, 256\ns_cbranch_scc1 L_exit')
        A('s_load_dwordx16 s[16:31], s[0:1], 0\ns_load_dwordx8 s[32:39], s[0:1], 64\ns_load_dwordx4 s[40:43], s[0:1], 96')
        A(f'v_lshrrev_b32 v1, 6, v0\nv_and_b32 v0, 63, v0\nv_readfirstlane_b32 s{sW}, v1')
        A(f's_and_b32 s{sG}, s2, 7\ns_lshr_b32 s{sI}, s2, 3')
        A(f's_cmp_lg_u32 s{sW}, 0\ns_cbranch_scc1 L_nz')
        A(f'v_lshlrev_b32 v8, 2, v0\nv_mov_b32 v9, 0\nds_write_b32 v8, v9 offset:{L_F}')
        A('L_nz:')
        A(f's_mov_b32 s{sSelLo}, 0x05040100\ns_mov_b32 s{sSelHi}, 0x07060302\ns_mov_b32 s{sHiMask}, 0xffff0000\ns_mov_b32 s{sCNT}, 200000\ns_mov_b32 s{sLog2e}, {LOG2E}')
        A(f's_getreg_b32 s{sXCC}, hwreg(HW_REG_XCC_ID, 0, 4)')
        A(f's_cmp_ge_u32 s{sW}, 4\ns_cbranch_scc1 L_tile')

    def post_kernarg(s):
        A=s.A
        A('s_waitcnt lgkmcnt(0)\ns_barrier')
        A(f's_load_dword s{sE}, s[{pWS}:{pWS+1}], 0')
        s.srd(44,pWS,WS_SIZE)

    def kv(s):
        A=s.A; o=s.o
        vK=1; vV=2; vQa=3; vKO=4; vST=31; Q=32; D=48; KR=64; VR=128; VT=192; ACC=64
        if s.prof: A(f'v_mov_b32 v{vST}, 0')
        s.stamp(0,vST)
        A(f's_lshr_b32 s64, s{sI}, 4\ns_and_b32 s65, s{sI}, 15')
        A(f's_lshl_b32 s66, s64, 3\ns_add_u32 s66, s66, s{sG}\ns_lshl_b32 s66, s66, 23\ns_add_u32 s66, s66, {7<<20}\ns_lshl_b32 s67, s65, 16\ns_add_u32 s66, s66, s67')
        A(f's_lshr_b32 s67, s{sI}, 2\ns_add_u32 s67, s67, s{sI}\ns_add_u32 s67, s67, s{sG}')
        for t in range(4):
            A(f's_add_u32 s68, s67, {t}\ns_and_b32 s68, s68, 3\ns_lshl_b32 s68, s68, 2\ns_add_u32 s68, s68, s{sW}\ns_lshl_b32 s68, s68, 12\ns_add_u32 s{70+t}, s66, s68')
        A(f'v_and_b32 v5, 3, v0\nv_lshlrev_b32 v5, 10, v5\nv_bfe_u32 v6, v0, 2, 2\nv_lshlrev_b32 v6, 8, v6\nv_lshrrev_b32 v7, 4, v0\nv_lshlrev_b32 v7, 4, v7\nv_add3_u32 v{vK}, v5, v6, v7')
        A(f'v_lshlrev_b32 v{vV}, 4, v0')
        s.post_kernarg()
        s.srd(48,pK,0x8000000); s.srd(52,pV,0x8000000)
        def xt_publish():
            s.get_tag()
            l=A.label('nxt')
            A(f's_cmp_lg_u32 s{sW}, 3\ns_cbranch_scc1 {l}')
            A(f's_lshl_b32 s8, s{sG}, 9\ns_lshl_b32 s9, s{sI}, 4\ns_add_u32 s8, s8, s9\ns_add_u32 s8, s8, {hex(WS_XT)}')
            A(f'v_mov_b32 v8, s{sXCC}\nv_mov_b32 v9, 0\nv_mov_b32 v10, 0\nv_mov_b32 v11, s{sT}\nv_mov_b32 v12, 0')
            A(f's_mov_b64 exec, 1\nbuffer_store_dwordx4 v[8:11], v12, {WS}, s8 offen sc1\ns_mov_b64 exec, -1')
            A(f'{l}:')
        def issue(thr, pre, gate):
            seq=[('K',t,kk) for t in range(4) for kk in range(4)]+[('V',t,r) for t in range(4) for r in range(4)]
            cnt=0; done_xt=False
            for n,(kind,t,x) in enumerate(seq):
                if gate is not None and n==pre:
                    if not done_xt: xt_publish(); done_xt=True
                    s.waitflags4(gate,8)
                    cnt=0
                if kind=='K':
                    A(f'buffer_load_dwordx4 v[{KR+16*t+4*x}:{KR+16*t+4*x+3}], v{vK}, {SA}, s{70+t} offen offset:{64*x} nt')
                else:
                    A(f'buffer_load_dwordx4 v[{VR+16*t+4*x}:{VR+16*t+4*x+3}], v{vV}, {SB}, s{70+t} offen offset:{1024*x} nt')
                cnt+=1
                if not done_xt and cnt==(4 if (thr==0 or thr>4) else thr): xt_publish(); done_xt=True
                if thr and cnt>thr: A(f's_waitcnt vmcnt({thr})')
                if n==15:
                    s.stamp(1,vST)
                    if o['gate_wo']=='K' or o['gate_mr']=='K' or o['gate_ffn']=='K': s.setflag(F_K, 5, 6, swave=sW)
        A(f's_cmp_lt_u32 s{sI}, {I_MF}\ns_cbranch_scc1 L_kv_mf')
        A(f's_cmp_lt_u32 s{sI}, {I_WQ}\ns_cbranch_scc1 L_kv_wq')
        if o['thr_wo']!=o['thr']:
            A(f's_cmp_lt_u32 s{sI}, {I_MR}\ns_cbranch_scc1 L_kv_wo')
        A('L_kv_norm:')
        issue(o['thr'],0,None)
        A('s_branch L_kv_join')
        A('L_kv_mf:')
        if o['gate_mf']:
            issue(o['thr'],0,F_G)
        else:
            issue(o['thr'],0,None)
        A('s_branch L_kv_join')
        if o['thr_wo']!=o['thr']:
            A('L_kv_wo:')
            issue(o['thr_wo'],0,None)
            A('s_branch L_kv_join')
        A('L_kv_wq:')
        issue(o['thr_wq'],o['pre_wq'],F_G)
        A('L_kv_join:')
        s.stamp(2,vST)
        s.setflag(F_KI, 5, 6, swave=sW)
        A(f'v_lshrrev_b32 v7, 4, v0\nv_lshlrev_b32 v7, 4, v7')
        A(f'v_and_b32 v5, 3, v0\nv_lshlrev_b32 v5, 8, v5\nv_add_u32 v{vQa}, v5, v7')
        A(f'v_and_b32 v5, 15, v0\nv_mul_u32_u24 v5, 576, v5\ns_mul_i32 s8, s{sW}, 2304\ns_add_u32 s8, s8, {L_KO}\nv_add3_u32 v{vKO}, v5, v7, s8')
        A('s_waitcnt vmcnt(8)')
        s.transpose(VR, VT)
        s.waitflag1(F_Q, 8)
        s.fast_from_flag(8)
        s.stamp(3,vST)
        for kk in range(4):
            A(f'ds_read_b128 v[{Q+4*kk}:{Q+4*kk+3}], v{vQa} offset:{L_Q+64*kk}')
        for kk in range(4):
            A(f's_waitcnt lgkmcnt({3-kk})')
            for t in range(4):
                c='0' if kk==0 else f'v[{D+4*t}:{D+4*t+3}]'
                A(f'v_mfma_f32_16x16x32_bf16 v[{D+4*t}:{D+4*t+3}], v[{KR+16*t+4*kk}:{KR+16*t+4*kk+3}], v[{Q+4*kk}:{Q+4*kk+3}], {c}')
        A('s_mov_b32 s10, 0x00f000f0\ns_mov_b32 s11, 0x00f000f0\ns_mov_b32 s12, 0x0f000f00\ns_mov_b32 s13, 0x0f000f00\ns_mov_b32 s14, 0xf000f000\ns_mov_b32 s15, 0xf000f000')
        S=8
        for r in range(4):
            A(f'v_cndmask_b32 v{S+r}, v{D+r}, v{D+4+r}, s[10:11]')
        for r in range(4):
            A(f'v_cndmask_b32 v{S+r}, v{S+r}, v{D+8+r}, s[12:13]')
        for r in range(4):
            A(f'v_cndmask_b32 v{S+r}, v{S+r}, v{D+12+r}, s[14:15]')
        s.round4(S,12)
        A('s_mov_b32 s8, 0x3db504f3')
        for r in range(4): A(f'v_mul_f32 v{S+r}, s8, v{S+r}')
        s.round4(S,12)
        A(f'v_max3_f32 v12, v{S}, v{S+1}, v{S+2}\nv_max_f32 v12, v12, v{S+3}')
        A('v_max_f32_dpp v12, v12, v12 row_ror:4 row_mask:0xf bank_mask:0xf\nv_max_f32_dpp v12, v12, v12 row_ror:8 row_mask:0xf bank_mask:0xf')
        s.swap16([12],[13],'v_max_f32'); s.swap32([12],[13],'v_max_f32')
        A(f'v_and_b32 v14, 3, v0\nv_lshlrev_b32 v14, 4, v14\ns_lshl_b32 s8, s{sW}, 2\nv_add_u32 v15, s8, v14')
        A('s_mov_b64 exec, 0xf')
        A(f'ds_write_b32 v15, v12 offset:{L_KM}')
        A('s_mov_b64 exec, -1')
        s.setflag(F_M, 16, 17, swave=sW)
        s.waitflags4(F_M, 16, extra=[f'ds_read_b128 v[24:27], v14 offset:{L_KM}'])
        A('v_max3_f32 v12, v24, v25, v26\nv_max_f32 v12, v12, v27')
        s.stamp(4,vST)
        for r in range(4): A(f'v_sub_f32 v{S+r}, v{S+r}, v12')
        for r in range(4): A(f'v_mul_f32 v{S+r}, s{sLog2e}, v{S+r}')
        for r in range(4): A(f'v_exp_f32 v{S+r}, v{S+r}')
        P=16
        A(f'v_cvt_pk_bf16_f32 v{P}, v{S}, v{S+1}\nv_cvt_pk_bf16_f32 v{P+1}, v{S+2}, v{S+3}')
        A(f'v_add_f32 v13, v{S}, v{S+1}\nv_add_f32 v28, v{S+2}, v{S+3}\nv_add_f32 v13, v13, v28')
        for (d,src,sh) in [(P+2,P,4),(P+3,P+1,4),(P+4,P,8),(P+5,P+1,8),(P+6,P,12),(P+7,P+1,12)]:
            A(f'v_mov_b32_dpp v{d}, v{src} row_shl:{sh} row_mask:0xf bank_mask:0xf bound_ctrl:0')
        for j in range(8):
            A(f'v_mfma_f32_16x16x32_bf16 v[{ACC+4*j}:{ACC+4*j+3}], v[{VT+4*j}:{VT+4*j+3}], v[{P}:{P+3}], 0')
        A('v_add_f32_dpp v13, v13, v13 row_ror:4 row_mask:0xf bank_mask:0xf\nv_add_f32_dpp v13, v13, v13 row_ror:8 row_mask:0xf bank_mask:0xf')
        s.swap16([13],[28]); s.swap32([13],[28])
        A('s_mov_b64 exec, 0xf')
        A(f'ds_write_b32 v15, v13 offset:{L_KL}')
        A('s_mov_b64 exec, -1')
        A('s_waitcnt vmcnt(0)')
        s.stamp(5,vST)
        s.transpose(VR+32, VT+32)
        for j in range(8):
            A(f'v_mfma_f32_16x16x32_bf16 v[{ACC+4*j}:{ACC+4*j+3}], v[{VT+32+4*j}:{VT+32+4*j+3}], v[{P+4}:{P+7}], v[{ACC+4*j}:{ACC+4*j+3}]')
        A('s_mov_b32 s10, 0x000f000f\ns_mov_b32 s11, 0x000f000f\ns_mov_b64 exec, s[10:11]')
        for j in range(8):
            A(f'ds_write_b128 v{vKO}, v[{ACC+4*j}:{ACC+4*j+3}] offset:{64*j}')
        A('s_mov_b64 exec, -1')
        s.setflag(F_O, 16, 17, swave=sW)
        A(f's_mul_i32 s8, s{sW}, 576\ns_add_u32 s8, s8, {L_KO}\nv_and_b32 v24, 31, v0\nv_lshlrev_b32 v24, 4, v24\nv_add_u32 v24, s8, v24')
        A(f's_lshl_b32 s9, s{sW}, 4\ns_add_u32 s9, s9, {L_KL}\nv_mov_b32 v25, s9')
        A(f's_lshl_b32 s8, s{sG}, 2\ns_add_u32 s8, s8, s{sW}\ns_lshl_b32 s8, s8, 1\ns_add_u32 s8, s8, s64\ns_lshl_b32 s8, s8, 4\ns_add_u32 s8, s8, s65\ns_mul_i32 s12, s8, 576\ns_add_u32 s12, s12, {hex(WS_AS)}')
        A(f'v_lshlrev_b32 v57, 4, v0')
        G=52
        A(f'v_mov_b32 v{G+2}, 0\nv_mov_b32 v{G+3}, s{sT}')
        O=32
        ex=[f'ds_read_b128 v[{O+4*w}:{O+4*w+3}], v24 offset:{2304*w}' for w in range(4)]+[f'ds_read_b128 v[48:51], v25']
        s.waitflags4(F_O, 16, extra=ex)
        for r in range(4):
            A(f'v_add_f32 v{O+r}, v{O+r}, v{O+4+r}\nv_add_f32 v{O+8+r}, v{O+8+r}, v{O+12+r}')
        for r in range(4):
            A(f'v_add_f32 v{O+r}, v{O+r}, v{O+8+r}')
        A('v_add_f32 v48, v48, v49\nv_add_f32 v50, v50, v51\nv_add_f32 v48, v48, v50')
        A(f'v_readlane_b32 s8, v12, s{sW}')
        A(f'v_cvt_pk_bf16_f32 v{G}, v{O}, v{O+1}\nv_cvt_pk_bf16_f32 v{G+1}, v{O+2}, v{O+3}')
        A(f'v_mov_b32 v56, s8')
        A('s_mov_b32 s10, 0\ns_mov_b32 s11, 1')
        A(f'v_cndmask_b32 v{G}, v{G}, v56, s[10:11]\nv_cndmask_b32 v{G+1}, v{G+1}, v48, s[10:11]')
        A('s_mov_b32 s10, -1\ns_mov_b32 s11, 1\ns_mov_b64 exec, s[10:11]')
        s.gstore(f'buffer_store_dwordx4 v[{G}:{G+3}], v57, {WS}, s12 offen')
        s.stamp(6,vST)
        s.stamp_flush(vST, 5)
        A('s_endpgm')

    def tile_consts(s):
        A=s.A
        A(f's_sub_u32 s{sTW}, s{sW}, 4')
        A(f's_mul_i32 s8, s{sTW}, 640\ns_add_u32 s8, s8, {L_ACT}')
        A(f'v_lshrrev_b32 v8, 5, v0\nv_and_b32 v9, 31, v0')
        A(f'v_mul_u32_u24 v10, {BSTR}, v8\nv_lshlrev_b32 v11, 3, v9\nv_add3_u32 v3, v10, v11, s8')
        A(f'v_and_b32 v10, 1, v0\nv_mul_u32_u24 v10, {BSTR}, v10\nv_bfe_u32 v11, v0, 1, 1\nv_lshlrev_b32 v11, 6, v11\nv_lshrrev_b32 v12, 4, v0\nv_lshlrev_b32 v12, 4, v12\nv_add3_u32 v7, v10, v11, v12')
        A(f'v_add_u32 v4, s8, v7')
        A(f'v_lshrrev_b32 v10, 4, v9\nv_lshlrev_b32 v10, 9, v10\nv_lshlrev_b32 v11, 8, v8\nv_and_b32 v12, 15, v0\nv_lshlrev_b32 v12, 4, v12\nv_add3_u32 v5, v10, v11, v12')
        A(f's_lshl_b32 s8, s{sTW}, 9\ns_add_u32 s8, s8, {L_PART}\nv_and_b32 v10, 7, v0\nv_lshlrev_b32 v10, 5, v10\nv_add_u32 v6, s8, v10')
    def wlane(s, dst, RS, cmask=7):
        A=s.A
        A(f'v_bfe_u32 v10, v0, 3, 1\nv_lshlrev_b32 v10, 5, v10\nv_lshrrev_b32 v11, 4, v0\nv_lshlrev_b32 v11, 3, v11\nv_add_u32 v10, v10, v11\nv_mul_u32_u24 v10, {RS}, v10\nv_and_b32 v11, {cmask}, v0\nv_lshlrev_b32 v11, 4, v11\nv_add_u32 v{dst}, v10, v11')
    def wloads(s, srd, vl, sbase, rowoffs, RS, raw, stmp=66, thr=0):
        A=s.A
        for n,ro in enumerate(rowoffs):
            if ro==0: so=f's{sbase}'
            else:
                A(f's_add_u32 s{stmp}, s{sbase}, {ro*RS}'); so=f's{stmp}'
            A(f'buffer_load_dwordx4 v[{raw+4*n}:{raw+4*n+3}], v{vl}, {srd}, {so} offen nt')
            if thr and n+1>thr and n+1<len(rowoffs): A(f's_waitcnt vmcnt({thr})')
    def xt_pre(s, d, va):
        return [f'buffer_load_dwordx4 v[{d}:{d+3}], v{va}, {WS}, s91 offen sc1']
    def xt_setup(s, va):
        s.A(f'v_and_b32 v{va}, 31, v0\nv_lshlrev_b32 v{va}, 4, v{va}\ns_lshl_b32 s91, s{sG}, 9\ns_add_u32 s91, s91, {hex(WS_XT)}')
    def xt_eval(s, d, t):
        A=s.A
        A(f'v_xor_b32 v{t}, s{sT}, v{d+3}\nv_xor_b32 v{t+1}, s{sXCC}, v{d}\nv_or_b32 v{t}, v{t}, v{t+1}\nv_cmp_ne_u32 vcc, 0, v{t}')
        A(f's_cmp_eq_u64 vcc, 0\ns_cselect_b32 s{sFast}, 1, 0')
    def qpoll(s, vST):
        A=s.A; dn=A.label('qd')
        A(f's_cmp_lg_u32 s{sTW}, 0\ns_cbranch_scc1 {dn}')
        A(f'v_lshrrev_b32 v8, 4, v0\nv_lshlrev_b32 v8, 9, v8\nv_and_b32 v9, 15, v0\nv_lshlrev_b32 v9, 4, v9\nv_add_u32 v8, v8, v9')
        A(f's_lshr_b32 s8, s{sI}, 4\ns_lshl_b32 s8, s8, 8\ns_lshl_b32 s66, s{sG}, 12\ns_add_u32 s66, s66, s8\ns_add_u32 s66, s66, {hex(WS_Q)}')
        s.xt_setup(9)
        s.poll([(16,8,'s66',0),(20,8,'s66',2048)],12,pre=s.xt_pre(24,9))
        A(f'v_lshlrev_b32 v9, 3, v0\nds_write_b64 v9, v[16:17] offset:{L_Q}\nds_write_b64 v9, v[20:21] offset:{L_Q+512}')
        s.xt_eval(24,12)
        A(f's_add_u32 s9, s{sFast}, 1')
        s.setflag(F_Q,8,10,val='s9')
        s.stamp(4,vST)
        A(f'{dn}:')
    def final_sum(s, O):
        A=s.A
        for r in range(4):
            A(f'v_add_f32 v{O+r}, v{O+r}, v{O+4+r}\nv_add_f32 v{O+8+r}, v{O+8+r}, v{O+12+r}')
        for r in range(4):
            A(f'v_add_f32 v{O+r}, v{O+r}, v{O+8+r}')
    def final_tile(s, O, G):
        s.final_sum(O)
        s.A(f'v_cvt_pk_bf16_f32 v{G}, v{O}, v{O+1}\nv_cvt_pk_bf16_f32 v{G+1}, v{O+2}, v{O+3}')
    def part_read_list(s, O, va):
        return [f'ds_read_b128 v[{O+4*w}:{O+4*w+3}], v{va} offset:{512*w}' for w in range(4)]
    def ln_apply(s, X, sm, srs, t):
        A=s.A
        for r in range(4): A(f'v_sub_f32 v{X+r}, v{X+r}, v{sm}')
        s.round4(X,t)
        for r in range(4): A(f'v_mul_f32 v{X+r}, v{X+r}, v{srs}')
        s.round4(X,t)
    def mod_apply(s, X, C1, SH, t):
        A=s.A
        for r in range(4): A(f'v_mul_f32 v{X+r}, v{X+r}, v{C1+r}')
        s.round4(X,t)
        for r in range(4): A(f'v_add_f32 v{X+r}, v{X+r}, v{SH+r}')
        A(f'v_cvt_pk_bf16_f32 v{t}, v{X}, v{X+1}\nv_cvt_pk_bf16_f32 v{t+1}, v{X+2}, v{X+3}')
    def ln_final(s, mean, var, t):
        A=s.A
        s.round1(mean,t); s.round1(var,t)
        A(f'v_add_f32 v{var}, 0x3727c5ac, v{var}')
        s.round1(var,t)
        A(f'v_sqrt_f32 v{var}, v{var}')
        s.round1(var,t)
        A(f'v_rcp_f32 v{var}, v{var}')
    def silu4(s, X, t):
        A=s.A
        for r in range(4): A(f'v_mul_f32 v{t+r}, s{sLog2e}, v{X+r}')
        for r in range(4): A(f'v_exp_f32 v{t+r}, -v{t+r}')
        for r in range(4): A(f'v_add_f32 v{t+r}, 1.0, v{t+r}')
        for r in range(4): A(f'v_rcp_f32 v{t+r}, v{t+r}')
        for r in range(4): A(f'v_mul_f32 v{X+r}, v{X+r}, v{t+r}')
    def gate(s, g):
        if g=='K': s.waitflags4(F_K,8)
        elif g=='KI': s.waitflags4(F_KI,8)

    def tile(s):
        A=s.A; o=s.o
        RAW=64; T=128; ACC=32; R=16
        vST=255
        A('L_tile:')
        if s.prof: A(f'v_mov_b32 v{vST}, 0')
        s.stamp(0,vST)
        s.tile_consts()
        s.post_kernarg()
        A(f's_cmp_lt_u32 s{sI}, {I_MF}\ns_cbranch_scc1 L_mf')
        A(f's_cmp_lt_u32 s{sI}, {I_WQ}\ns_cbranch_scc1 L_wq')
        A(f's_cmp_lt_u32 s{sI}, {I_WO}\ns_cbranch_scc1 L_wo')
        A(f's_cmp_lt_u32 s{sI}, {I_MR}\ns_cbranch_scc1 L_mr')
        A(f's_cmp_lt_u32 s{sI}, {I_FFN}\ns_cbranch_scc1 L_ffn')
        s.get_tag()
        A('s_branch L_qpoll')

        A('L_mf:')
        s.srd(56,pC,2048); s.srd(48,pWM,512*6144)
        A(f's_lshl_b32 s65, s{sG}, 1\ns_and_b32 s8, s{sI}, 1\ns_add_u32 s65, s65, s8\ns_lshr_b32 s69, s{sI}, 1')
        A(f's_lshl_b32 s68, s69, 8\ns_lshl_b32 s8, s{sTW}, 6\ns_add_u32 s68, s68, s8')
        A('v_bfe_u32 v8, v0, 4, 1\nv_and_b32 v9, 15, v0\nv_lshlrev_b32 v10, 10, v8\nv_lshlrev_b32 v11, 3, v9\nv_add_u32 v12, v10, v11\ns_lshl_b32 s8, s68, 1')
        A(f'buffer_load_dwordx2 v[14:15], v12, {SC}, s8 offen')
        s.wlane(2,6144)
        A(f's_mul_i32 s67, s68, 6144\ns_lshl_b32 s8, s65, 7\ns_add_u32 s67, s67, s8')
        s.wloads(SA,2,67,list(range(8)),6144,RAW)
        s.setflag(F_G,8,9,swave=sTW)
        A(f's_mul_i32 s8, s{sTW}, 640\ns_add_u32 s8, s8, {L_ACT}')
        A(f'v_bfe_u32 v8, v0, 4, 1\nv_mul_u32_u24 v10, {BSTR}, v8\nv_and_b32 v9, 15, v0\nv_lshlrev_b32 v11, 3, v9\nv_add3_u32 v3, v10, v11, s8')
        s.get_tag()
        A('s_waitcnt vmcnt(8)')
        s.unpack2(14,8,9); s.unpack2(15,10,11)
        s.silu4(8,16)
        A('v_cvt_pk_bf16_f32 v12, v8, v9\nv_cvt_pk_bf16_f32 v13, v10, v11')
        A('ds_write_b64 v3, v[12:13]')
        A(f'v_and_b32 v200, 31, v0\nv_lshlrev_b32 v200, 4, v200\nv_add_u32 v201, {L_PART}, v200')
        A(f's_lshl_b32 s66, s65, 10\ns_lshl_b32 s8, s69, 9\ns_add_u32 s66, s66, s8\ns_add_u32 s66, s66, {hex(WS_MF)}')
        A(f'v_mov_b32 v202, s{sT}')
        A('s_mov_b32 s70, 0x03020104\ns_mov_b32 s71, 0x03020105\ns_mov_b32 s72, 0x03020106\ns_mov_b32 s73, 0x03020107')
        A('s_waitcnt vmcnt(0)')
        s.stamp(1,vST)
        s.transpose(RAW,T)
        A('s_waitcnt lgkmcnt(0)')
        s.mm(4,1,T,8,ACC,R)
        s.part_write(R,6)
        s.setflag(F_T1,8,9,swave=sTW)
        A(f's_cmp_lg_u32 s{sTW}, 0\ns_cbranch_scc1 L_tail')
        s.waitflags4(F_T1,8,extra=s.part_read_list(32,201))
        s.final_sum(32)
        for r in range(4): A(f'v_perm_b32 v{16+r}, v202, v{32+r}, s{70+r}')
        A('s_mov_b32 exec_hi, 0')
        A(f'buffer_store_dwordx4 v[16:19], v200, {WS}, s66 offen sc1')
        A('s_mov_b32 exec_hi, -1')
        s.stamp(3,vST)
        A('s_branch L_qpoll')

        A('L_wq:')
        s.srd(56,pX,2048); s.srd(48,pWQ,512*8192)
        A(f'v_lshrrev_b32 v8, 5, v0\nv_and_b32 v9, 31, v0\nv_lshlrev_b32 v10, 10, v8\nv_lshlrev_b32 v11, 3, v9\ns_lshl_b32 s8, s{sTW}, 8\nv_add3_u32 v12, v10, v11, s8\nv_lshlrev_b32 v11, 5, v9\nv_add_u32 v13, v10, v11')
        A(f'buffer_load_dwordx2 v[14:15], v12, {SC}, 0 offen\nbuffer_load_dwordx4 v[16:19], v13, {SC}, 0 offen\nbuffer_load_dwordx4 v[20:23], v13, {SC}, 0 offen offset:16')
        s.wlane(2,8192)
        A(f's_sub_u32 s69, s{sI}, {I_MF}')
        A(f's_mul_i32 s65, s{sTW}, {128*8192}\ns_lshl_b32 s8, s{sG}, 10\ns_lshl_b32 s9, s69, 7\ns_add_u32 s65, s65, s8\ns_add_u32 s65, s65, s9')
        s.wloads(SA,2,65,[64*blk+ii for blk in range(2) for ii in range(8)],8192,RAW)
        A('s_waitcnt vmcnt(16)')
        for k in range(8): s.unpack2(16+k, 32+2*k, 33+2*k)
        A('v_add_f32 v48, v32, v33')
        for k in range(2,16): A(f'v_add_f32 v48, v48, v{32+k}')
        s.rowsum16([48]); s.swap16([48],[49])
        A('v_mul_f32 v48, 0x3b000000, v48')
        for k in range(16): A(f'v_sub_f32 v{32+k}, v{32+k}, v48')
        A('v_mul_f32 v50, v32, v32')
        for k in range(1,16): A(f'v_fmac_f32 v50, v{32+k}, v{32+k}')
        s.rowsum16([50]); s.swap16([50],[49])
        A('v_mul_f32 v50, 0x3b000000, v50')
        s.ln_final(48,50,49)
        s.unpack2(14,8,9); s.unpack2(15,10,11)
        s.ln_apply(8,48,50,12)
        A('v_bfe_u32 v12, v0, 4, 1\nv_lshlrev_b32 v12, 10, v12\nv_lshrrev_b32 v13, 5, v0\nv_lshlrev_b32 v13, 8, v13\nv_and_b32 v14, 15, v0\nv_lshlrev_b32 v14, 4, v14\nv_add3_u32 v202, v12, v13, v14')
        A(f's_lshl_b32 s66, s{sTW}, 11\ns_add_u32 s66, s66, {hex(WS_MF)}\ns_add_u32 s67, s66, {8*1024}')
        A('s_mov_b32 s70, 0x0c0c0400\ns_mov_b32 s71, 0x04000c0c\ns_mov_b32 s72, 0xffffff00')
        s.sF4a=70; s.sF4b=71
        s.xt_setup(203)
        s.get_tag()
        A('s_waitcnt vmcnt(0)')
        s.stamp(1,vST)
        s.transpose(RAW,T); s.transpose(RAW+32,T+32)
        s.poll([],12,f4=[(16,202,'s66',0),(20,202,'s66',512),(24,202,'s67',0),(28,202,'s67',512)],pre=s.xt_pre(32,203))
        s.setflag(F_G,36,37,swave=sTW)
        s.stamp(2,vST)
        s.xt_eval(32,12)
        for r in range(16): A(f'v_and_b32 v{16+r}, s72, v{16+r}')
        for r in range(4): A(f'v_add_f32 v{16+r}, v{16+r}, v{20+r}\nv_add_f32 v{28+r}, v{28+r}, v{24+r}')
        s.round4(16,12)
        s.round4(28,12)
        for r in range(4): A(f'v_add_f32 v{28+r}, 1.0, v{28+r}')
        s.round4(28,12)
        s.mod_apply(8,28,16,12)
        A('ds_write_b64 v3, v[12:13]')
        A(f'v_and_b32 v200, 31, v0\nv_lshlrev_b32 v200, 4, v200\nv_add_u32 v201, {L_PART}, v200')
        A(f's_lshl_b32 s66, s{sG}, 12\ns_lshl_b32 s8, s69, 9\ns_add_u32 s66, s66, s8\ns_add_u32 s66, s66, {hex(WS_Q)}')
        A('s_waitcnt lgkmcnt(0)')
        s.mm(4,2,T,8,ACC,R)
        s.part_write(R,6)
        s.setflag(F_T1,8,9,swave=sTW)
        A(f's_cmp_lg_u32 s{sTW}, 0\ns_cbranch_scc1 L_tail')
        A(f'v_mov_b32 v18, 0\nv_mov_b32 v19, s{sT}')
        s.waitflags4(F_T1,8,extra=s.part_read_list(32,201))
        s.final_tile(32,16)
        A('s_mov_b32 exec_hi, 0')
        s.gstore(f'buffer_store_dwordx4 v[16:19], v200, {WS}, s66 offen')
        A('s_mov_b32 exec_hi, -1')
        s.stamp(3,vST)
        A('s_branch L_qpoll')

        A('L_mr:')
        s.srd(56,pC,2048); s.srd(48,pWM,512*6144)
        A(f's_lshl_b32 s65, s{sG}, 2\ns_add_u32 s65, s65, s{sI}\ns_sub_u32 s65, s65, {I_WO-16}')
        A(f'v_lshrrev_b32 v8, 5, v0\nv_and_b32 v9, 31, v0\nv_lshlrev_b32 v10, 10, v8\nv_lshlrev_b32 v11, 3, v9\ns_lshl_b32 s8, s{sTW}, 8\nv_add3_u32 v12, v10, v11, s8')
        A(f'buffer_load_dwordx2 v[60:61], v12, {SC}, 0 offen')
        s.wlane(2,6144)
        A(f's_mul_i32 s67, s{sTW}, {128*6144}\ns_lshl_b32 s8, s65, 7\ns_add_u32 s67, s67, s8')
        s.get_tag()
        if o['gate_mr']!='start':
            s.qpoll(vST); s.gate(o['gate_mr'])
        s.wloads(SA,2,67,[64*blk+ii for blk in range(2) for ii in range(8)],6144,RAW,stmp=68,thr=o['thr_w'])
        if o['gate_mr']=='start': s.qpoll(vST)
        A('s_waitcnt vmcnt(16)')
        s.unpack2(60,8,9); s.unpack2(61,10,11)
        s.silu4(8,16)
        A('v_cvt_pk_bf16_f32 v12, v8, v9\nv_cvt_pk_bf16_f32 v13, v10, v11')
        A('ds_write_b64 v3, v[12:13]')
        A('s_waitcnt vmcnt(0)')
        s.stamp(1,vST)
        s.transpose(RAW,T); s.transpose(RAW+32,T+32)
        A('s_waitcnt lgkmcnt(0)')
        s.mm(4,2,T,8,ACC,R)
        s.part_write(R,6)
        s.setflag(F_T1,8,9,swave=sTW)
        A(f's_cmp_lg_u32 s{sTW}, 0\ns_cbranch_scc1 L_tail')
        A(f'v_and_b32 v13, 31, v0\nv_lshlrev_b32 v13, 4, v13\nv_add_u32 v14, {L_PART}, v13')
        s.waitflags4(F_T1,8,extra=s.part_read_list(32,14))
        s.final_tile(32,16)
        A(f'v_mov_b32 v18, 0\nv_mov_b32 v19, s{sT}')
        A(f's_lshl_b32 s66, s65, 9\ns_add_u32 s66, s66, {hex(WS_MOD)}')
        A('s_mov_b32 exec_hi, 0')
        A(f'buffer_store_dwordx4 v[16:19], v13, {WS}, s66 offen sc1')
        A('s_mov_b32 exec_hi, -1')
        s.stamp(3,vST)
        A('s_branch L_tdone')

        A('L_wo:')
        s.srd(48,pWO,4096*1024)
        A('v_bfe_u32 v10, v0, 4, 1\nv_lshlrev_b32 v10, 6, v10\nv_bfe_u32 v11, v0, 3, 1\nv_lshlrev_b32 v11, 1, v11\nv_lshrrev_b32 v12, 5, v0\nv_add3_u32 v10, v10, v11, v12\nv_lshlrev_b32 v10, 10, v10\nv_and_b32 v11, 7, v0\nv_lshlrev_b32 v11, 4, v11\nv_add_u32 v2, v10, v11')
        A(f's_sub_u32 s65, s{sI}, {I_WQ}\ns_lshr_b32 s65, s65, 1\ns_and_b32 s69, s{sI}, 1\ns_lshl_b32 s68, s{sG}, 2\ns_add_u32 s68, s68, s65')
        A(f's_lshl_b32 s67, s68, 17\ns_lshl_b32 s8, s69, 9\ns_add_u32 s67, s67, s8\ns_lshl_b32 s8, s{sTW}, 7\ns_add_u32 s67, s67, s8')
        s.get_tag()
        if o['gate_wo']!='start':
            s.qpoll(vST); s.gate(o['gate_wo'])
        s.stamp(2,vST)
        s.wloads(SA,2,67,[32*(ii>>2)+8*(ii&3)+4*blk for blk in range(2) for ii in range(8)],1024,RAW,stmp=70,thr=o['thr_w'])
        if o['gate_wo']=='start': s.qpoll(vST)
        A('s_waitcnt vmcnt(8)')
        s.transpose(RAW,T)
        A('s_waitcnt vmcnt(0)')
        s.stamp(1,vST)
        s.transpose(RAW+32,T+32)
        A('s_branch L_wo2')

        A('L_ffn:')
        A(f's_mul_i32 s65, s{sG}, 7\ns_add_u32 s65, s65, s{sI}\ns_sub_u32 s65, s65, {I_MR}')
        s.srd(48,pW1,512*3584); s.srd(52,pW3,512*3584); s.srd(56,pW2,1792*1024)
        s.wlane(2,3584,cmask=3)
        A(f's_mul_i32 s67, s{sTW}, {128*3584}\ns_lshl_b32 s8, s65, 6\ns_add_u32 s67, s67, s8')
        A('v_lshrrev_b32 v10, 4, v0\nv_lshlrev_b32 v10, 13, v10\nv_and_b32 v11, 15, v0\nv_lshlrev_b32 v11, 4, v11\nv_add_u32 v1, v10, v11')
        A(f's_lshl_b32 s69, s65, 15\ns_lshl_b32 s8, s{sTW}, 8\ns_add_u32 s69, s69, s8')
        A('s_mov_b32 s72, 0x0f0f0f0f\ns_mov_b32 s73, 0x0f0f0f0f\ns_mov_b32 s74, 0xf0f0f0f0\ns_mov_b32 s75, 0xf0f0f0f0')
        s.get_tag()
        s.qpoll(vST)
        s.gate(o['gate_ffn'])
        s.stamp(2,vST)
        for blk in range(2):
            A('s_mov_b64 exec, s[72:73]')
            s.wloads(SA,2,67,[64*blk+ii for ii in range(8)],3584,RAW+32*blk,stmp=68)
            A('s_mov_b64 exec, s[74:75]')
            s.wloads(SB,2,67,[64*blk+ii for ii in range(8)],3584,RAW+32*blk,stmp=68)
        A('s_mov_b64 exec, -1')
        s.wloads(SC,1,69,list(range(8)),1024,192,stmp=68)
        A('s_waitcnt vmcnt(24)')
        s.transpose(RAW,T)
        A('s_waitcnt vmcnt(8)')
        s.transpose(RAW+32,T+32)
        A('s_waitcnt vmcnt(0)')
        s.stamp(1,vST)
        s.transpose(192,RAW)
        A('s_branch L_ffn2')

        A('L_qpoll:')
        s.qpoll(vST)
        A('s_branch L_tdone')
        A('L_tail:')
        A(f's_cmp_eq_u32 s{sTW}, 1\ns_cbranch_scc1 L_b1\ns_branch L_tdone')

        A('L_wo2:')
        A(f's_and_b32 s70, s{sTW}, 1\ns_lshr_b32 s71, s{sTW}, 1')
        A(f's_lshl_b32 s72, s68, 1\ns_add_u32 s72, s72, s70\ns_mul_i32 s72, s72, {16*576}\ns_add_u32 s72, s72, {hex(WS_AS)}')
        A(f's_lshl_b32 s8, s71, 8\ns_add_u32 s73, s72, s8\ns_add_u32 s74, s73, {2*2304}')
        A('v_lshrrev_b32 v8, 4, v0\nv_and_b32 v9, 15, v0\nv_mul_u32_u24 v10, 576, v8\nv_lshlrev_b32 v11, 4, v9\nv_add_u32 v12, v10, v11')
        A('v_and_b32 v11, 3, v0\nv_mul_u32_u24 v11, 2304, v11\nv_add3_u32 v13, v10, v11, 0\nv_add_u32 v13, 512, v13')
        A(f's_mul_i32 s8, s70, {BSTR}\ns_lshl_b32 s9, s71, 7\ns_add_u32 s8, s8, s9\ns_add_u32 s8, s8, {L_OACT}\nv_lshlrev_b32 v14, 3, v9\nv_add_u32 v14, s8, v14')
        A(f'v_add_u32 v15, {L_OACT}, v7')
        A(f'v_and_b32 v2, 7, v0\nv_mul_u32_u24 v2, 48, v2\ns_lshl_b32 s8, s69, 5\ns_lshl_b32 s9, s{sTW}, 3\ns_add_u32 s8, s8, s9\ns_mul_i32 s8, s8, 48\ns_mul_i32 s75, s68, 3072\ns_add_u32 s75, s75, s8\ns_add_u32 s75, s75, {hex(WS_AO)}')
        A('v_mov_b32 v56, v12')
        s.waitflags4(F_O,8)
        s.poll([(32,56,'s73',0),(36,56,'s73',2304),(40,56,'s74',0),(44,56,'s74',2304),(48,13,'s72',0)],8)
        s.stamp(5,vST)
        A('v_mov_b32 v50, v48')
        A('v_max_f32_dpp v50, v50, v50 quad_perm:[1,0,3,2] row_mask:0xf bank_mask:0xf\nv_max_f32_dpp v50, v50, v50 quad_perm:[2,3,0,1] row_mask:0xf bank_mask:0xf')
        s.swap16([50],[51],'v_max_f32'); s.swap32([50],[51],'v_max_f32')
        A(f'v_sub_f32 v48, v48, v50\nv_mul_f32 v48, s{sLog2e}, v48\nv_exp_f32 v48, v48')
        A('v_mul_f32 v49, v48, v49')
        A('v_add_f32_dpp v49, v49, v49 quad_perm:[1,0,3,2] row_mask:0xf bank_mask:0xf\nv_add_f32_dpp v49, v49, v49 quad_perm:[2,3,0,1] row_mask:0xf bank_mask:0xf')
        s.swap16([49],[51]); s.swap32([49],[51])
        A('v_rcp_f32 v49, v49\nv_mul_f32 v48, v48, v49')
        for q in range(4):
            s.unpack2(32+4*q, 16, 17); s.unpack2(33+4*q, 18, 19)
            for e in range(4):
                op='v_mul_f32_dpp' if q==0 else 'v_fmac_f32_dpp'
                A(f'{op} v{20+e}, v48, v{16+e} quad_perm:[{q},{q},{q},{q}] row_mask:0xf bank_mask:0xf')
        s.swap16([20,21,22,23],[16,17,18,19]); s.swap32([20,21,22,23],[16,17,18,19])
        A('v_cvt_pk_bf16_f32 v16, v20, v21\nv_cvt_pk_bf16_f32 v17, v22, v23')
        A('s_mov_b64 exec, 0xffff\nds_write_b64 v14, v[16:17]\ns_mov_b64 exec, -1')
        s.setflag(F_T2,8,9,swave=sTW)
        s.waitflags4(F_T2,8)
        s.mm(15,2,T,8,ACC,R)
        s.publishR(lambda b,j: R+8*b+j,32,2,'s75','0xff')
        s.stamp(6,vST)
        A('s_branch L_tdone')

        A('L_b1:')
        A(f's_sub_u32 s8, s{sI}, 8\ns_cmp_ge_u32 s{sI}, {I_WO}\ns_cselect_b32 s65, s8, s{sI}')
        s.srd(56,pX,2048); s.srd(60,pOUT,2048)
        A('v_and_b32 v8, 3, v0\nv_bfe_u32 v9, v0, 2, 2\nv_lshrrev_b32 v10, 4, v0\nv_lshrrev_b32 v11, 5, v0\nv_bfe_u32 v12, v0, 4, 1')
        A('v_lshlrev_b32 v13, 10, v11\nv_lshlrev_b32 v14, 4, v8\nv_lshlrev_b32 v15, 3, v12\nv_add3_u32 v13, v13, v14, v15\ns_lshl_b32 s8, s65, 6\nv_add_u32 v2, s8, v13')
        A(f'buffer_load_dwordx2 v[16:17], v2, {SC}, 0 offen')
        A('v_lshlrev_b32 v13, 8, v11\nv_lshlrev_b32 v14, 5, v8\nv_lshlrev_b32 v15, 4, v12\nv_add3_u32 v13, v13, v14, v15\ns_and_b32 s8, s65, 1\ns_lshl_b32 s8, s8, 7\nv_add_u32 v3, s8, v13')
        A(f's_lshr_b32 s8, s65, 1\ns_lshl_b32 s8, s8, 9\ns_add_u32 s66, s8, {hex(WS_MOD+16*512)}\ns_add_u32 s67, s66, {24*512}')
        A('v_lshlrev_b32 v13, 11, v11\nv_lshlrev_b32 v14, 5, v8\nv_lshlrev_b32 v15, 4, v12\nv_add3_u32 v13, v13, v14, v15\ns_lshl_b32 s8, s65, 7\nv_add_u32 v4, s8, v13')
        A(f's_lshl_b32 s68, s{sG}, 12\ns_add_u32 s68, s68, {hex(WS_X1)}')
        A('v_lshlrev_b32 v13, 8, v11\ns_lshl_b32 s8, s65, 4\nv_add_u32 v5, s8, v13')
        A(f's_lshl_b32 s69, s{sG}, 9\ns_add_u32 s69, s69, {hex(WS_XS)}')
        A('v_lshlrev_b32 v13, 2, v10\nv_add_u32 v13, v13, v9\nv_mul_u32_u24 v13, 3072, v13\nv_mul_u32_u24 v14, 48, v8\ns_mul_i32 s8, s65, 192\nv_add3_u32 v6, v13, v14, s8')
        A(f's_mov_b32 s70, {hex(WS_AO)}\ns_mov_b32 s71, {hex(WS_AO+16*3072)}')
        A(f's_mov_b32 s72, {hex(WS_YO)}\ns_mov_b32 s73, {hex(WS_YO+16*3072)}\ns_mov_b32 s74, {hex(WS_YO+32*3072)}\ns_mov_b32 s75, {hex(WS_YO+48*3072)}')
        SEL=64
        A('v_bfe_u32 v13, v0, 1, 3\nv_and_b32 v14, 1, v0\nv_mov_b32 v15, 0x3f80\nv_mov_b32 v7, 0x3f800000\nv_cmp_eq_u32 vcc, 1, v14\nv_cndmask_b32 v15, v15, v7, vcc')
        for kind in range(3):
            for pp in range(4):
                x=3*kind+pp
                d=SEL+4*kind+pp
                if pp==3 or x>7: A(f'v_mov_b32 v{d}, 0')
                else: A(f'v_cmp_eq_u32 vcc, {x}, v13\nv_cndmask_b32 v{d}, 0, v15, vcc')
        s.poll([(20,3,'s66',0),(24,3,'s67',0)],13)
        s.unpack2(16,28,29); s.unpack2(17,30,31)
        s.unpack2(20,32,33); s.unpack2(21,34,35)
        s.unpack2(24,36,37); s.unpack2(25,38,39)
        s.stamp(5,vST)
        GA=80
        def gather_reduce(bases, nfull):
            full=[(GA+12*st+4*k,6,bases[st],16*k) for st in range(nfull) for k in range(3)]
            mk=[(GA+12*st+4*k,6,bases[st],16*k) for st in range(nfull,len(bases)) for k in range(3)]
            for (d,_,_,_) in mk:
                A(f'v_mov_b32 v{d}, 0\nv_mov_b32 v{d+1}, 0\nv_mov_b32 v{d+2}, 0\nv_mov_b32 v{d+3}, s{sT}')
            s.poll(full,13,masked=mk)
            n=3*len(bases)
            for k in range(n): A(f'v_mov_b32 v{GA+4*k+3}, 0')
            for k in range(n):
                acc=40 if k%2==0 else 44
                c='0' if k<2 else f'v[{acc}:{acc+3}]'
                A(f'v_mfma_f32_16x16x32_bf16 v[{acc}:{acc+3}], v[{SEL+4*(k%3)}:{SEL+4*(k%3)+3}], v[{GA+4*k}:{GA+4*k+3}], {c}')
            for r in range(4): A(f'v_add_f32 v{40+r}, v{40+r}, v{44+r}')
            for sh in (4,8):
                for r in range(4):
                    A(f'v_add_f32_dpp v{40+r}, v{40+r}, v{40+r} row_ror:{sh} row_mask:0xf bank_mask:0xf')
        s.waitflags4(F_O,48)
        s.waitflag1(F_Q,48); s.fast_from_flag(48)
        A(f'v_mov_b32 v58, 0\nv_mov_b32 v59, s{sT}')
        gather_reduce(['s70','s71'],2)
        s.stamp(6,vST)
        s.round4(40,13)
        for r in range(4): A(f'v_mul_f32 v{40+r}, v{32+r}, v{40+r}')
        s.round4(40,13)
        for r in range(4): A(f'v_add_f32 v{40+r}, v{28+r}, v{40+r}')
        A('v_cvt_pk_bf16_f32 v44, v40, v41\nv_cvt_pk_bf16_f32 v45, v42, v43')
        A(f'v_mov_b32 v46, 0\nv_mov_b32 v47, s{sT}')
        A('s_mov_b32 s10, 0x000f000f\ns_mov_b32 s11, 0x000f000f\ns_mov_b64 exec, s[10:11]')
        s.gstore(f'buffer_store_dwordx4 v[44:47], v4, {WS}, s68 offen')
        A('s_mov_b64 exec, -1')
        s.unpack2(44,28,29); s.unpack2(45,30,31)
        A('v_add_f32 v56, v28, v29\nv_add_f32 v57, v30, v31\nv_add_f32 v56, v56, v57')
        A('v_mul_f32 v57, v28, v28\nv_fmac_f32 v57, v29, v29\nv_fmac_f32 v57, v30, v30\nv_fmac_f32 v57, v31, v31')
        for qp in ('[1,0,3,2]','[2,3,0,1]'):
            for r in (56,57): A(f'v_add_f32_dpp v{r}, v{r}, v{r} quad_perm:{qp} row_mask:0xf bank_mask:0xf')
        s.swap16([56,57],[52,53])
        A('s_mov_b32 s10, 1\ns_mov_b32 s11, 1\ns_mov_b64 exec, s[10:11]')
        s.gstore(f'buffer_store_dwordx4 v[56:59], v5, {WS}, s69 offen')
        A('s_mov_b64 exec, -1')
        s.stamp(7,vST)
        A(f's_and_b32 s8, s65, 7\ns_cmp_lg_u32 s8, s{sG}\ns_cbranch_scc1 L_tdone')
        gather_reduce(['s72','s73','s74','s75'],3)
        s.stamp(8,vST)
        s.round4(40,13)
        for r in range(4): A(f'v_mul_f32 v{40+r}, v{36+r}, v{40+r}')
        s.round4(40,13)
        for r in range(4): A(f'v_add_f32 v{40+r}, v{28+r}, v{40+r}')
        A('v_cvt_pk_bf16_f32 v44, v40, v41\nv_cvt_pk_bf16_f32 v45, v42, v43')
        A('s_mov_b32 s10, 0x000f000f\ns_mov_b32 s11, 0x000f000f\ns_mov_b64 exec, s[10:11]')
        A(f'buffer_store_dwordx2 v[44:45], v2, {SD}, 0 offen')
        A('s_mov_b64 exec, -1')
        A('s_cmp_lg_u32 s65, 0\ns_cbranch_scc1 L_tdone')
        A(f'v_mov_b32 v44, s{sT}\nv_mov_b32 v45, 0\ns_mov_b64 exec, 1\nbuffer_store_dword v44, v45, {WS}, 0 offen sc1\ns_mov_b64 exec, -1')
        s.stamp(9,vST)
        A('s_branch L_tdone')

        A('L_ffn2:')
        A(f's_lshl_b32 s66, s{sTW}, 10\ns_add_u32 s66, s66, {hex(WS_MOD+24*512)}\ns_add_u32 s67, s66, {8*512}')
        s.poll([(16,5,'s66',0),(20,5,'s67',0)],12)
        s.unpack2(16,24,25); s.unpack2(17,26,27)
        s.unpack2(20,28,29); s.unpack2(21,30,31)
        for r in range(4): A(f'v_add_f32 v{28+r}, 1.0, v{28+r}')
        s.round4(28,12)
        A(f'v_lshrrev_b32 v8, 5, v0\nv_and_b32 v9, 31, v0\nv_lshlrev_b32 v10, 11, v8\nv_lshlrev_b32 v11, 4, v9\ns_lshl_b32 s8, s{sTW}, 9\nv_add3_u32 v13, v10, v11, s8')
        A('v_lshlrev_b32 v10, 8, v8\nv_and_b32 v11, 15, v0\nv_lshlrev_b32 v11, 4, v11\nv_add_u32 v14, v10, v11')
        A(f's_lshl_b32 s70, s{sG}, 12\ns_add_u32 s70, s70, {hex(WS_X1)}\ns_lshl_b32 s71, s{sG}, 9\ns_add_u32 s71, s71, {hex(WS_XS)}')
        A(f'v_and_b32 v96, 31, v0\nv_lshlrev_b32 v96, 4, v96\nv_add_u32 v2, {L_PART}, v96')
        A(f's_lshl_b32 s8, s{sTW}, 8\ns_add_u32 s8, s8, {L_H2}\nv_lshrrev_b32 v97, 1, v96\nv_add_u32 v97, s8, v97')
        A('v_and_b32 v10, 1, v0\nv_lshlrev_b32 v10, 7, v10\nv_lshrrev_b32 v12, 4, v0\nv_lshlrev_b32 v12, 4, v12\nv_add3_u32 v98, v10, v12, s8')
        A(f'v_and_b32 v99, 15, v0\nv_mul_u32_u24 v99, 48, v99\ns_mul_i32 s8, s{sTW}, {16*48}\ns_mul_i32 s75, s65, 3072\ns_add_u32 s75, s75, s8\ns_add_u32 s75, s75, {hex(WS_YO)}')
        s.stamp(5,vST)
        s.waitflags4(F_O,8)
        s.poll([(16,13,'s70',0),(20,14,'s71',0)],10)
        s.stamp(6,vST)
        s.rowsum16([20,21])
        A('v_mul_f32 v20, 0x3b000000, v20\nv_mul_f32 v21, 0x3b000000, v21\nv_fma_f32 v21, -v20, v20, v21\nv_max_f32 v21, 0, v21')
        s.ln_final(20,21,12)
        s.unpack2(16,8,9); s.unpack2(17,10,11)
        s.ln_apply(8,20,21,12)
        s.mod_apply(8,28,24,12)
        A('ds_write_b64 v3, v[12:13]\ns_waitcnt lgkmcnt(0)')
        s.mm(4,2,T,8,ACC,R)
        s.part_write(R,6)
        s.setflag(F_T1,8,9,swave=sTW)
        s.waitflags4(F_T1,8,extra=s.part_read_list(32,2))
        s.stamp(7,vST)
        s.final_sum(32)
        s.round4(32,12)
        for r in range(4): A(f'v_mov_b32_dpp v{28+r}, v{32+r} row_shl:8 row_mask:0xf bank_mask:0xf bound_ctrl:0')
        s.silu4(32,16)
        s.round4(32,12)
        for r in range(4): A(f'v_mul_f32 v{32+r}, v{32+r}, v{28+r}')
        A('v_cvt_pk_bf16_f32 v12, v32, v33\nv_cvt_pk_bf16_f32 v13, v34, v35')
        A('ds_write_b64 v97, v[12:13]\ns_waitcnt lgkmcnt(0)')
        s.mm(98,1,RAW,8,ACC,None)
        s.publishR(lambda b,j: ACC+4*j+b,16,99,'s75','0xffff')
        s.stamp(9,vST)
        A('L_tdone:')
        s.stamp_flush(vST, 8)
        A('s_endpgm')

    def build(s):
        A=s.A
        s.prologue(); s.kv(); s.tile()
        A('L_exit:\ns_endpgm')
        body,nn=fix_hazards(A.L)
        hdr=[f'; @launch grid=(256,1,1) block=(512,1,1) lds={L_SIZE}',
             '.amdgcn_target "amdgcn-amd-amdhsa--gfx950"','.text',f'.globl {NAME}_kernel','.p2align 8',f'.type {NAME}_kernel,@function',f'{NAME}_kernel:']
        ftr=f'''.section .rodata,"a"
.p2align 6
.amdhsa_kernel {NAME}_kernel
  .amdhsa_next_free_vgpr 256
  .amdhsa_next_free_sgpr 102
  .amdhsa_accum_offset 256
  .amdhsa_group_segment_fixed_size 0
  .amdhsa_kernarg_size 112
  .amdhsa_user_sgpr_count 2
  .amdhsa_user_sgpr_kernarg_segment_ptr 1
  .amdhsa_system_sgpr_workgroup_id_x 1
.end_amdhsa_kernel'''
        return '\n'.join(hdr+body)+'\n'+ftr+'\n', nn

def gen(out, prof=False, **opts):
    k=K(prof=prof,opts=opts)
    txt,nn=k.build()
    open(out,'w').write(txt)
    return txt.count('\n'),nn

if __name__=='__main__':
    import argparse
    ap=argparse.ArgumentParser()
    ap.add_argument('-o',default='k3.s'); ap.add_argument('--prof',action='store_true')
    ap.add_argument('opts',nargs='*')
    a=ap.parse_args()
    opts={}
    for kv in a.opts:
        k,v=kv.split('='); opts[k]=int(v) if v.lstrip('-').isdigit() else v
    print('written',a.o,gen(a.o,a.prof,**opts))
```

```python
import sys
sys.path.insert(0,'gen')
from asmlib import *
NAME='adaLN_cond__sliding_block_cached__glu_gated_swiglu__decode'

WS_MOD  = 0x1000
WS_Q    = 0x8000
WS_AS   = 0x10000
WS_AO   = 0xA0000
WS_X1   = 0xB8000
WS_XS   = 0xC0000
WS_XT   = 0xC1000
WS_MF   = 0xC4000
WS_YO   = 0xC8000
WS_PROF = 0x100000
WS_SIZE = 0x180000
L_Q=0x0; L_F=0x400; L_KM=0x500; L_KL=0x540; L_KO=0x600; L_ACT=0x2A00; L_PART=0x3400; L_OACT=0x3C00; L_H2=0x3E80; L_SIZE=0x4400
F_Q=0; F_M=4; F_O=8; F_T1=12; F_T2=16; F_KI=20; F_K=24; F_G=28
BSTR=384
sW=3; sG=4; sI=5; sE=6; sT=7
pX=16; pK=18; pV=20; pWQ=22; pWO=24; pW1=28; pW3=30; pW2=32; pC=34; pWM=36; pOUT=38; pDBG=40; pWS=42
WS='s[44:47]'; SA='s[48:51]'; SB='s[52:55]'; SC='s[56:59]'; SD='s[60:63]'
sTW=64; sSelLo=80; sSelHi=81; sHiMask=82; sFast=83; sCNT=84; sLog2e=85; sXCC=90
LOG2E='0x3fb8aa3b'
I_MF=4; I_WQ=12; I_WO=20; I_MR=24; I_FFN=31

DEF=dict(thr=4, thr_wq=8, pre_wq=0, thr_wo=4, thr_w=4, gate_wo='start', gate_mr='start', gate_ffn='KI', fast=1, gate_mf=1, pf=0, pf_i=24, pf_kb=24, pad=0, xdiag=0)

class K:
    def __init__(s, prof=False, opts=None):
        s.A=Asm(); s.prof=prof; s.o=dict(DEF); s.o.update(opts or {})
    def srd(s, base, ptr, size):
        A=s.A
        A(f's_mov_b32 s{base}, s{ptr}\ns_mov_b32 s{base+1}, s{ptr+1}\ns_mov_b32 s{base+2}, {hex(size)}\ns_mov_b32 s{base+3}, 0x20000')
    def stamp(s, idx, vst):
        if not s.prof: return
        s.A(f's_memrealtime s[86:87]\ns_waitcnt lgkmcnt(0)\nv_writelane_b32 v{vst}, s86, {idx}')
    def stamp_flush(s, vst, vtmp):
        if not s.prof: return
        A=s.A
        A(f's_mov_b64 exec, -1')
        A(f's_lshl_b32 s88, s2, 3\ns_add_u32 s88, s88, s{sW}\ns_lshl_b32 s88, s88, 8\ns_add_u32 s88, s88, {hex(WS_PROF)}')
        A(f'v_mbcnt_lo_u32_b32 v{vtmp}, -1, 0\nv_mbcnt_hi_u32_b32 v{vtmp}, -1, v{vtmp}\nv_lshlrev_b32 v{vtmp}, 2, v{vtmp}')
        A(f'buffer_store_dword v{vst}, v{vtmp}, {WS}, s88 offen')
    def poll(s, loads, tmp, f4=(), pre=None, masked=()):
        A=s.A; lp=A.label('poll'); dn=A.label('pdone')
        A(f'{lp}:')
        for e in (pre or []): A(e)
        for (d,va,so,imm) in list(loads)+list(f4):
            A(f'buffer_load_dwordx4 v[{d}:{d+3}], v{va}, {WS}, {so} offen offset:{imm} sc1')
        if masked:
            A('s_mov_b32 exec_hi, 0')
            for (d,va,so,imm) in masked:
                A(f'buffer_load_dwordx4 v[{d}:{d+3}], v{va}, {WS}, {so} offen offset:{imm} sc1')
            A('s_mov_b32 exec_hi, -1')
        A('s_waitcnt vmcnt(0)')
        first=True
        for (d,va,so,imm) in list(loads)+list(masked):
            if first: A(f'v_xor_b32 v{tmp}, s{sT}, v{d+3}'); first=False
            else:
                A(f'v_xor_b32 v{tmp+1}, s{sT}, v{d+3}\nv_or_b32 v{tmp}, v{tmp}, v{tmp+1}')
        for (d,va,so,imm) in f4:
            A(f'v_perm_b32 v{tmp+1}, v{d+1}, v{d}, s{s.sF4a}\nv_perm_b32 v{tmp+2}, v{d+3}, v{d+2}, s{s.sF4b}')
            A(f'v_or_b32 v{tmp+1}, v{tmp+1}, v{tmp+2}')
            if first: A(f'v_xor_b32 v{tmp}, s{sT}, v{tmp+1}'); first=False
            else: A(f'v_xor_b32 v{tmp+1}, s{sT}, v{tmp+1}\nv_or_b32 v{tmp}, v{tmp}, v{tmp+1}')
        A(f'v_cmp_ne_u32 vcc, 0, v{tmp}')
        A(f's_cbranch_vccz {dn}')
        A(f's_sub_u32 s{sCNT}, s{sCNT}, 1\ns_cbranch_scc0 {lp}\ns_mov_b32 s{sCNT}, 0')
        A(f'{dn}:')
    def setflag(s, word, vaddr_tmp, vone, swave=None, val='1'):
        A=s.A
        if swave is None:
            A(f'v_mov_b32 v{vaddr_tmp}, {L_F+4*word}')
        else:
            A(f's_lshl_b32 s8, s{swave}, 2\ns_add_u32 s8, s8, {L_F+4*word}\nv_mov_b32 v{vaddr_tmp}, s8')
        A(f'v_mov_b32 v{vone}, {val}')
        A(f's_mov_b64 s[10:11], exec\ns_mov_b64 exec, 1')
        A(f'ds_write_b32 v{vaddr_tmp}, v{vone}')
        A(f's_mov_b64 exec, s[10:11]')
    def waitflags4(s, word, vt, extra=None):
        A=s.A; lp=A.label('lw'); dn=A.label('lwd')
        A(f'v_mov_b32 v{vt+4}, {L_F+4*word}')
        A(f'{lp}:')
        A(f'ds_read_b128 v[{vt}:{vt+3}], v{vt+4}')
        for e in (extra or []): A(e)
        A('s_waitcnt lgkmcnt(0)')
        A(f'v_min3_u32 v{vt}, v{vt}, v{vt+1}, v{vt+2}\nv_min_u32 v{vt}, v{vt}, v{vt+3}')
        A(f'v_cmp_ne_u32 vcc, 0, v{vt}')
        A(f's_cbranch_vccnz {dn}')
        A(f's_sub_u32 s{sCNT}, s{sCNT}, 1\ns_cbranch_scc0 {lp}\ns_mov_b32 s{sCNT}, 0')
        A(f'{dn}:')
    def waitflag1(s, word, vt):
        A=s.A; lp=A.label('lw'); dn=A.label('lwd')
        A(f'v_mov_b32 v{vt+1}, {L_F+4*word}')
        A(f'{lp}:')
        A(f'ds_read_b32 v{vt}, v{vt+1}')
        A('s_waitcnt lgkmcnt(0)')
        A(f'v_cmp_ne_u32 vcc, 0, v{vt}')
        A(f's_cbranch_vccnz {dn}')
        A(f's_sub_u32 s{sCNT}, s{sCNT}, 1\ns_cbranch_scc0 {lp}\ns_mov_b32 s{sCNT}, 0')
        A(f'{dn}:')
    def fast_from_flag(s, vt):
        s.A(f'v_readfirstlane_b32 s{sFast}, v{vt}\ns_lshr_b32 s{sFast}, s{sFast}, 1')
    def gstore(s, text):
        A=s.A
        if not s.o['fast']:
            A(text+' sc1'); return
        l1=A.label('slow'); l2=A.label('sd')
        A(f's_cmp_eq_u32 s{sFast}, 0\ns_cbranch_scc1 {l1}')
        A(text); A(f's_branch {l2}\n{l1}:'); A(text+' sc1'); A(f'{l2}:')
    def unpack2(s, src, lo, hi):
        s.A(f'v_lshlrev_b32 v{lo}, 16, v{src}\nv_and_b32 v{hi}, s{sHiMask}, v{src}')
    def round4(s, v, t):
        A=s.A
        A(f'v_cvt_pk_bf16_f32 v{t}, v{v}, v{v+1}\nv_cvt_pk_bf16_f32 v{t+1}, v{v+2}, v{v+3}')
        s.unpack2(t, v, v+1); s.unpack2(t+1, v+2, v+3)
    def round1(s, v, t):
        A=s.A
        A(f'v_cvt_pk_bf16_f32 v{t}, v{v}, v{v}\nv_lshlrev_b32 v{v}, 16, v{t}')
    def transpose(s, raw, dst):
        A=s.A
        for jj in range(4):
            for pp in range(4):
                a=raw+(2*pp)*4+jj; b=raw+(2*pp+1)*4+jj
                A(f'v_perm_b32 v{dst+(2*jj)*4+pp}, v{b}, v{a}, s{sSelLo}')
                A(f'v_perm_b32 v{dst+(2*jj+1)*4+pp}, v{b}, v{a}, s{sSelHi}')
    def rowsum16(s, regs, op='v_add_f32'):
        A=s.A
        for sh in (8,4,2,1):
            for r in regs:
                A(f'{op}_dpp v{r}, v{r}, v{r} row_ror:{sh} row_mask:0xf bank_mask:0xf')
    def swap16(s, regs, tmps, op='v_add_f32'):
        A=s.A
        for r,t in zip(regs,tmps): A(f'v_mov_b32 v{t}, v{r}')
        for r,t in zip(regs,tmps): A(f'v_permlane16_swap_b32 v{r}, v{t}')
        for r,t in zip(regs,tmps): A(f'{op} v{r}, v{r}, v{t}')
    def swap32(s, regs, tmps, op='v_add_f32'):
        A=s.A
        for r,t in zip(regs,tmps): A(f'v_mov_b32 v{t}, v{r}')
        for r,t in zip(regs,tmps): A(f'v_permlane32_swap_b32 v{r}, v{t}')
        for r,t in zip(regs,tmps): A(f'{op} v{r}, v{r}, v{t}')
    def mm(s, actaddr, nblk, T, act, acc, R):
        A=s.A
        for blk in range(nblk):
            A(f'ds_read_b128 v[{act+4*blk}:{act+4*blk+3}], v{actaddr} offset:{128*blk}')
        for blk in range(nblk):
            A(f's_waitcnt lgkmcnt({nblk-1-blk})')
            for j in range(8):
                c = '0' if blk==0 else f'v[{acc+4*j}:{acc+4*j+3}]'
                A(f'v_mfma_f32_16x16x32_bf16 v[{acc+4*j}:{acc+4*j+3}], v[{act+4*blk}:{act+4*blk+3}], v[{T+32*blk+4*j}:{T+32*blk+4*j+3}], {c}')
        if R is None: return
        for j in range(8):
            for b in range(2):
                A(f'v_add_f32_dpp v{R+8*b+j}, v{acc+4*j+2+b}, v{acc+4*j+b} row_shl:8 row_mask:0xf bank_mask:0xf')
    def part_write(s, R, vaddr):
        A=s.A
        A('s_mov_b64 exec, 0xff')
        A(f'ds_write_b128 v{vaddr}, v[{R}:{R+3}]\nds_write_b128 v{vaddr}, v[{R+4}:{R+7}] offset:16')
        A(f'ds_write_b128 v{vaddr}, v[{R+8}:{R+11}] offset:256\nds_write_b128 v{vaddr}, v[{R+12}:{R+15}] offset:272')
        A('s_mov_b64 exec, -1')
    def publishR(s, reg, G, vaddr, soff, mask):
        A=s.A
        idx=[(0,0),(0,2),(0,4),(0,6),(1,0),(1,2),(1,4),(1,6)]
        slots=[G+0,G+1,G+2,G+4,G+5,G+6,G+8,G+9]
        A(f'v_mov_b32 v{G+10}, 0')
        A(f'v_mov_b32 v{G+3}, s{sT}\nv_mov_b32 v{G+7}, s{sT}\nv_mov_b32 v{G+11}, s{sT}')
        for (b,j),d in zip(idx,slots):
            A(f'v_cvt_pk_bf16_f32 v{d}, v{reg(b,j)}, v{reg(b,j+1)}')
        A(f's_mov_b64 exec, {mask}')
        for k in range(3):
            A(f'buffer_store_dwordx4 v[{G+4*k}:{G+4*k+3}], v{vaddr}, {WS}, {soff} offen offset:{16*k} sc1')
        A('s_mov_b64 exec, -1')
    def get_tag(s):
        s.A(f's_waitcnt lgkmcnt(0)\ns_mul_i32 s{sT}, s{sE}, 1664525\ns_add_u32 s{sT}, s{sT}, 1013904223')

    def prologue(s):
        A=s.A
        A('s_cmp_ge_u32 s2, 256\ns_cbranch_scc1 L_exit')
        if s.o['pad'] or s.o['xdiag']: A('s_memrealtime s[94:95]')
        A('s_load_dwordx16 s[16:31], s[0:1], 0\ns_load_dwordx8 s[32:39], s[0:1], 64\ns_load_dwordx4 s[40:43], s[0:1], 96')
        A(f'v_lshrrev_b32 v1, 6, v0\nv_and_b32 v0, 63, v0\nv_readfirstlane_b32 s{sW}, v1')
        A(f's_and_b32 s{sG}, s2, 7\ns_lshr_b32 s{sI}, s2, 3')
        if s.o['pf']:
            A(f's_cmp_lg_u32 s{sW}, 7\ns_cbranch_scc1 L_nopf\ns_cmp_lt_u32 s{sI}, {s.o["pf_i"]}\ns_cbranch_scc1 L_nopf')
            A(f's_getpc_b64 s[92:93]\nL_pc:\ns_sub_u32 s92, s92, L_pc-{NAME}_kernel\ns_subb_u32 s93, s93, 0')
            A('v_lshlrev_b32 v7, 7, v0')
            for k in range((s.o['pf_kb']+7)//8):
                if k: A('v_add_u32 v7, 0x2000, v7')
                A(f'v_min_u32 v4, L_exit-{NAME}_kernel, v7\nv_mov_b32 v5, s93\nv_add_co_u32 v4, vcc, s92, v4\nv_addc_co_u32 v5, vcc, 0, v5, vcc')
                A(f'global_load_dword v{250+k}, v[4:5], off')
            A('L_nopf:')
        A(f's_cmp_lg_u32 s{sW}, 0\ns_cbranch_scc1 L_nz')
        A(f'v_lshlrev_b32 v8, 2, v0\nv_mov_b32 v9, 0\nds_write_b32 v8, v9 offset:{L_F}')
        A('L_nz:')
        A(f's_mov_b32 s{sSelLo}, 0x05040100\ns_mov_b32 s{sSelHi}, 0x07060302\ns_mov_b32 s{sHiMask}, 0xffff0000\ns_mov_b32 s{sCNT}, 200000\ns_mov_b32 s{sLog2e}, {LOG2E}')
        A(f's_getreg_b32 s{sXCC}, hwreg(HW_REG_XCC_ID, 0, 4)')
        if s.o['xdiag']:
            A(f's_cmp_eq_u32 s{sXCC}, s{sG}\ns_cbranch_scc1 L_xd2\ns_waitcnt lgkmcnt(0)\nL_xd1:\ns_memrealtime s[96:97]\ns_waitcnt lgkmcnt(0)\ns_sub_u32 s96, s96, s94\ns_cmp_lt_u32 s96, {s.o["xdiag"]}\ns_cbranch_scc1 L_xd1\nL_xd2:')
        A(f's_cmp_ge_u32 s{sW}, 4\ns_cbranch_scc1 L_tile')

    def endpgm(s):
        A=s.A
        if s.o['pad']:
            l=A.label('pad')
            A(f'{l}:\ns_memrealtime s[96:97]\ns_waitcnt lgkmcnt(0)\ns_sub_u32 s96, s96, s94\ns_cmp_lt_u32 s96, {s.o["pad"]}\ns_cbranch_scc1 {l}')
        A('s_endpgm')

    def post_kernarg(s):
        A=s.A
        A('s_waitcnt lgkmcnt(0)\ns_barrier')
        A(f's_load_dword s{sE}, s[{pWS}:{pWS+1}], 0')
        s.srd(44,pWS,WS_SIZE)

    def kv(s):
        A=s.A; o=s.o
        vK=1; vV=2; vQa=3; vKO=4; vST=31; Q=32; D=48; KR=64; VR=128; VT=192; ACC=64
        if s.prof: A(f'v_mov_b32 v{vST}, 0')
        s.stamp(0,vST)
        A(f's_lshr_b32 s64, s{sI}, 4\ns_and_b32 s65, s{sI}, 15')
        A(f's_lshl_b32 s66, s64, 3\ns_add_u32 s66, s66, s{sG}\ns_lshl_b32 s66, s66, 23\ns_add_u32 s66, s66, {7<<20}\ns_lshl_b32 s67, s65, 16\ns_add_u32 s66, s66, s67')
        A(f's_lshr_b32 s67, s{sI}, 2\ns_add_u32 s67, s67, s{sI}\ns_add_u32 s67, s67, s{sG}')
        for t in range(4):
            A(f's_add_u32 s68, s67, {t}\ns_and_b32 s68, s68, 3\ns_lshl_b32 s68, s68, 2\ns_add_u32 s68, s68, s{sW}\ns_lshl_b32 s68, s68, 12\ns_add_u32 s{70+t}, s66, s68')
        A(f'v_and_b32 v5, 3, v0\nv_lshlrev_b32 v5, 10, v5\nv_bfe_u32 v6, v0, 2, 2\nv_lshlrev_b32 v6, 8, v6\nv_lshrrev_b32 v7, 4, v0\nv_lshlrev_b32 v7, 4, v7\nv_add3_u32 v{vK}, v5, v6, v7')
        A(f'v_lshlrev_b32 v{vV}, 4, v0')
        s.post_kernarg()
        s.srd(48,pK,0x8000000); s.srd(52,pV,0x8000000)
        def xt_publish():
            s.get_tag()
            l=A.label('nxt')
            A(f's_cmp_lg_u32 s{sW}, 3\ns_cbranch_scc1 {l}')
            A(f's_lshl_b32 s8, s{sG}, 9\ns_lshl_b32 s9, s{sI}, 4\ns_add_u32 s8, s8, s9\ns_add_u32 s8, s8, {hex(WS_XT)}')
            A(f'v_mov_b32 v8, s{sXCC}\nv_mov_b32 v9, 0\nv_mov_b32 v10, 0\nv_mov_b32 v11, s{sT}\nv_mov_b32 v12, 0')
            A(f's_mov_b64 exec, 1\nbuffer_store_dwordx4 v[8:11], v12, {WS}, s8 offen sc1\ns_mov_b64 exec, -1')
            A(f'{l}:')
        def issue(thr, pre, gate):
            seq=[('K',t,kk) for t in range(4) for kk in range(4)]+[('V',t,r) for t in range(4) for r in range(4)]
            cnt=0; done_xt=False
            for n,(kind,t,x) in enumerate(seq):
                if gate is not None and n==pre:
                    if not done_xt: xt_publish(); done_xt=True
                    s.waitflags4(gate,8)
                    cnt=0
                if kind=='K':
                    A(f'buffer_load_dwordx4 v[{KR+16*t+4*x}:{KR+16*t+4*x+3}], v{vK}, {SA}, s{70+t} offen offset:{64*x} nt')
                else:
                    A(f'buffer_load_dwordx4 v[{VR+16*t+4*x}:{VR+16*t+4*x+3}], v{vV}, {SB}, s{70+t} offen offset:{1024*x} nt')
                cnt+=1
                if not done_xt and cnt==(4 if (thr==0 or thr>4) else thr): xt_publish(); done_xt=True
                if thr and cnt>thr: A(f's_waitcnt vmcnt({thr})')
                if n==15:
                    s.stamp(1,vST)
                    if o['gate_wo']=='K' or o['gate_mr']=='K' or o['gate_ffn']=='K': s.setflag(F_K, 5, 6, swave=sW)
        A(f's_cmp_lt_u32 s{sI}, {I_MF}\ns_cbranch_scc1 L_kv_mf')
        A(f's_cmp_lt_u32 s{sI}, {I_WQ}\ns_cbranch_scc1 L_kv_wq')
        if o['thr_wo']!=o['thr']:
            A(f's_cmp_lt_u32 s{sI}, {I_MR}\ns_cbranch_scc1 L_kv_wo')
        A('L_kv_norm:')
        issue(o['thr'],0,None)
        A('s_branch L_kv_join')
        A('L_kv_mf:')
        if o['gate_mf']:
            issue(o['thr'],0,F_G)
        else:
            issue(o['thr'],0,None)
        A('s_branch L_kv_join')
        if o['thr_wo']!=o['thr']:
            A('L_kv_wo:')
            issue(o['thr_wo'],0,None)
            A('s_branch L_kv_join')
        A('L_kv_wq:')
        issue(o['thr_wq'],o['pre_wq'],F_G)
        A('L_kv_join:')
        s.stamp(2,vST)
        s.setflag(F_KI, 5, 6, swave=sW)
        A(f'v_lshrrev_b32 v7, 4, v0\nv_lshlrev_b32 v7, 4, v7')
        A(f'v_and_b32 v5, 3, v0\nv_lshlrev_b32 v5, 8, v5\nv_add_u32 v{vQa}, v5, v7')
        A(f'v_and_b32 v5, 15, v0\nv_mul_u32_u24 v5, 576, v5\ns_mul_i32 s8, s{sW}, 2304\ns_add_u32 s8, s8, {L_KO}\nv_add3_u32 v{vKO}, v5, v7, s8')
        A('s_waitcnt vmcnt(8)')
        s.transpose(VR, VT)
        s.waitflag1(F_Q, 8)
        s.fast_from_flag(8)
        s.stamp(3,vST)
        for kk in range(4):
            A(f'ds_read_b128 v[{Q+4*kk}:{Q+4*kk+3}], v{vQa} offset:{L_Q+64*kk}')
        for kk in range(4):
            A(f's_waitcnt lgkmcnt({3-kk})')
            for t in range(4):
                c='0' if kk==0 else f'v[{D+4*t}:{D+4*t+3}]'
                A(f'v_mfma_f32_16x16x32_bf16 v[{D+4*t}:{D+4*t+3}], v[{KR+16*t+4*kk}:{KR+16*t+4*kk+3}], v[{Q+4*kk}:{Q+4*kk+3}], {c}')
        A('s_mov_b32 s10, 0x00f000f0\ns_mov_b32 s11, 0x00f000f0\ns_mov_b32 s12, 0x0f000f00\ns_mov_b32 s13, 0x0f000f00\ns_mov_b32 s14, 0xf000f000\ns_mov_b32 s15, 0xf000f000')
        S=8
        for r in range(4):
            A(f'v_cndmask_b32 v{S+r}, v{D+r}, v{D+4+r}, s[10:11]')
        for r in range(4):
            A(f'v_cndmask_b32 v{S+r}, v{S+r}, v{D+8+r}, s[12:13]')
        for r in range(4):
            A(f'v_cndmask_b32 v{S+r}, v{S+r}, v{D+12+r}, s[14:15]')
        s.round4(S,12)
        A('s_mov_b32 s8, 0x3db504f3')
        for r in range(4): A(f'v_mul_f32 v{S+r}, s8, v{S+r}')
        s.round4(S,12)
        A(f'v_max3_f32 v12, v{S}, v{S+1}, v{S+2}\nv_max_f32 v12, v12, v{S+3}')
        A('v_max_f32_dpp v12, v12, v12 row_ror:4 row_mask:0xf bank_mask:0xf\nv_max_f32_dpp v12, v12, v12 row_ror:8 row_mask:0xf bank_mask:0xf')
        s.swap16([12],[13],'v_max_f32'); s.swap32([12],[13],'v_max_f32')
        A(f'v_and_b32 v14, 3, v0\nv_lshlrev_b32 v14, 4, v14\ns_lshl_b32 s8, s{sW}, 2\nv_add_u32 v15, s8, v14')
        A('s_mov_b64 exec, 0xf')
        A(f'ds_write_b32 v15, v12 offset:{L_KM}')
        A('s_mov_b64 exec, -1')
        s.setflag(F_M, 16, 17, swave=sW)
        s.waitflags4(F_M, 16, extra=[f'ds_read_b128 v[24:27], v14 offset:{L_KM}'])
        A('v_max3_f32 v12, v24, v25, v26\nv_max_f32 v12, v12, v27')
        s.stamp(4,vST)
        for r in range(4): A(f'v_sub_f32 v{S+r}, v{S+r}, v12')
        for r in range(4): A(f'v_mul_f32 v{S+r}, s{sLog2e}, v{S+r}')
        for r in range(4): A(f'v_exp_f32 v{S+r}, v{S+r}')
        P=16
        A(f'v_cvt_pk_bf16_f32 v{P}, v{S}, v{S+1}\nv_cvt_pk_bf16_f32 v{P+1}, v{S+2}, v{S+3}')
        A(f'v_add_f32 v13, v{S}, v{S+1}\nv_add_f32 v28, v{S+2}, v{S+3}\nv_add_f32 v13, v13, v28')
        for (d,src,sh) in [(P+2,P,4),(P+3,P+1,4),(P+4,P,8),(P+5,P+1,8),(P+6,P,12),(P+7,P+1,12)]:
            A(f'v_mov_b32_dpp v{d}, v{src} row_shl:{sh} row_mask:0xf bank_mask:0xf bound_ctrl:0')
        for j in range(8):
            A(f'v_mfma_f32_16x16x32_bf16 v[{ACC+4*j}:{ACC+4*j+3}], v[{VT+4*j}:{VT+4*j+3}], v[{P}:{P+3}], 0')
        A('v_add_f32_dpp v13, v13, v13 row_ror:4 row_mask:0xf bank_mask:0xf\nv_add_f32_dpp v13, v13, v13 row_ror:8 row_mask:0xf bank_mask:0xf')
        s.swap16([13],[28]); s.swap32([13],[28])
        A('s_mov_b64 exec, 0xf')
        A(f'ds_write_b32 v15, v13 offset:{L_KL}')
        A('s_mov_b64 exec, -1')
        A('s_waitcnt vmcnt(0)')
        s.stamp(5,vST)
        s.transpose(VR+32, VT+32)
        for j in range(8):
            A(f'v_mfma_f32_16x16x32_bf16 v[{ACC+4*j}:{ACC+4*j+3}], v[{VT+32+4*j}:{VT+32+4*j+3}], v[{P+4}:{P+7}], v[{ACC+4*j}:{ACC+4*j+3}]')
        A('s_mov_b32 s10, 0x000f000f\ns_mov_b32 s11, 0x000f000f\ns_mov_b64 exec, s[10:11]')
        for j in range(8):
            A(f'ds_write_b128 v{vKO}, v[{ACC+4*j}:{ACC+4*j+3}] offset:{64*j}')
        A('s_mov_b64 exec, -1')
        s.setflag(F_O, 16, 17, swave=sW)
        A(f's_mul_i32 s8, s{sW}, 576\ns_add_u32 s8, s8, {L_KO}\nv_and_b32 v24, 31, v0\nv_lshlrev_b32 v24, 4, v24\nv_add_u32 v24, s8, v24')
        A(f's_lshl_b32 s9, s{sW}, 4\ns_add_u32 s9, s9, {L_KL}\nv_mov_b32 v25, s9')
        A(f's_lshl_b32 s8, s{sG}, 2\ns_add_u32 s8, s8, s{sW}\ns_lshl_b32 s8, s8, 1\ns_add_u32 s8, s8, s64\ns_lshl_b32 s8, s8, 4\ns_add_u32 s8, s8, s65\ns_mul_i32 s12, s8, 576\ns_add_u32 s12, s12, {hex(WS_AS)}')
        A(f'v_lshlrev_b32 v57, 4, v0')
        G=52
        A(f'v_mov_b32 v{G+2}, 0\nv_mov_b32 v{G+3}, s{sT}')
        O=32
        ex=[f'ds_read_b128 v[{O+4*w}:{O+4*w+3}], v24 offset:{2304*w}' for w in range(4)]+[f'ds_read_b128 v[48:51], v25']
        s.waitflags4(F_O, 16, extra=ex)
        for r in range(4):
            A(f'v_add_f32 v{O+r}, v{O+r}, v{O+4+r}\nv_add_f32 v{O+8+r}, v{O+8+r}, v{O+12+r}')
        for r in range(4):
            A(f'v_add_f32 v{O+r}, v{O+r}, v{O+8+r}')
        A('v_add_f32 v48, v48, v49\nv_add_f32 v50, v50, v51\nv_add_f32 v48, v48, v50')
        A(f'v_readlane_b32 s8, v12, s{sW}')
        A(f'v_cvt_pk_bf16_f32 v{G}, v{O}, v{O+1}\nv_cvt_pk_bf16_f32 v{G+1}, v{O+2}, v{O+3}')
        A(f'v_mov_b32 v56, s8')
        A('s_mov_b32 s10, 0\ns_mov_b32 s11, 1')
        A(f'v_cndmask_b32 v{G}, v{G}, v56, s[10:11]\nv_cndmask_b32 v{G+1}, v{G+1}, v48, s[10:11]')
        A('s_mov_b32 s10, -1\ns_mov_b32 s11, 1\ns_mov_b64 exec, s[10:11]')
        s.gstore(f'buffer_store_dwordx4 v[{G}:{G+3}], v57, {WS}, s12 offen')
        s.stamp(6,vST)
        s.stamp_flush(vST, 5)
        s.endpgm()

    def tile_consts(s):
        A=s.A
        A(f's_sub_u32 s{sTW}, s{sW}, 4')
        A(f's_mul_i32 s8, s{sTW}, 640\ns_add_u32 s8, s8, {L_ACT}')
        A(f'v_lshrrev_b32 v8, 5, v0\nv_and_b32 v9, 31, v0')
        A(f'v_mul_u32_u24 v10, {BSTR}, v8\nv_lshlrev_b32 v11, 3, v9\nv_add3_u32 v3, v10, v11, s8')
        A(f'v_and_b32 v10, 1, v0\nv_mul_u32_u24 v10, {BSTR}, v10\nv_bfe_u32 v11, v0, 1, 1\nv_lshlrev_b32 v11, 6, v11\nv_lshrrev_b32 v12, 4, v0\nv_lshlrev_b32 v12, 4, v12\nv_add3_u32 v7, v10, v11, v12')
        A(f'v_add_u32 v4, s8, v7')
        A(f'v_lshrrev_b32 v10, 4, v9\nv_lshlrev_b32 v10, 9, v10\nv_lshlrev_b32 v11, 8, v8\nv_and_b32 v12, 15, v0\nv_lshlrev_b32 v12, 4, v12\nv_add3_u32 v5, v10, v11, v12')
        A(f's_lshl_b32 s8, s{sTW}, 9\ns_add_u32 s8, s8, {L_PART}\nv_and_b32 v10, 7, v0\nv_lshlrev_b32 v10, 5, v10\nv_add_u32 v6, s8, v10')
    def wlane(s, dst, RS, cmask=7):
        A=s.A
        A(f'v_bfe_u32 v10, v0, 3, 1\nv_lshlrev_b32 v10, 5, v10\nv_lshrrev_b32 v11, 4, v0\nv_lshlrev_b32 v11, 3, v11\nv_add_u32 v10, v10, v11\nv_mul_u32_u24 v10, {RS}, v10\nv_and_b32 v11, {cmask}, v0\nv_lshlrev_b32 v11, 4, v11\nv_add_u32 v{dst}, v10, v11')
    def wloads(s, srd, vl, sbase, rowoffs, RS, raw, stmp=66, thr=0):
        A=s.A
        for n,ro in enumerate(rowoffs):
            if ro==0: so=f's{sbase}'
            else:
                A(f's_add_u32 s{stmp}, s{sbase}, {ro*RS}'); so=f's{stmp}'
            A(f'buffer_load_dwordx4 v[{raw+4*n}:{raw+4*n+3}], v{vl}, {srd}, {so} offen nt')
            if thr and n+1>thr and n+1<len(rowoffs): A(f's_waitcnt vmcnt({thr})')
    def xt_pre(s, d, va):
        return [f'buffer_load_dwordx4 v[{d}:{d+3}], v{va}, {WS}, s91 offen sc1']
    def xt_setup(s, va):
        s.A(f'v_and_b32 v{va}, 31, v0\nv_lshlrev_b32 v{va}, 4, v{va}\ns_lshl_b32 s91, s{sG}, 9\ns_add_u32 s91, s91, {hex(WS_XT)}')
    def xt_eval(s, d, t):
        A=s.A
        A(f'v_xor_b32 v{t}, s{sT}, v{d+3}\nv_xor_b32 v{t+1}, s{sXCC}, v{d}\nv_or_b32 v{t}, v{t}, v{t+1}\nv_cmp_ne_u32 vcc, 0, v{t}')
        A(f's_cmp_eq_u64 vcc, 0\ns_cselect_b32 s{sFast}, 1, 0')
    def qpoll(s, vST):
        A=s.A; dn=A.label('qd')
        A(f's_cmp_lg_u32 s{sTW}, 0\ns_cbranch_scc1 {dn}')
        A(f'v_lshrrev_b32 v8, 4, v0\nv_lshlrev_b32 v8, 9, v8\nv_and_b32 v9, 15, v0\nv_lshlrev_b32 v9, 4, v9\nv_add_u32 v8, v8, v9')
        A(f's_lshr_b32 s8, s{sI}, 4\ns_lshl_b32 s8, s8, 8\ns_lshl_b32 s66, s{sG}, 12\ns_add_u32 s66, s66, s8\ns_add_u32 s66, s66, {hex(WS_Q)}')
        s.xt_setup(9)
        s.poll([(16,8,'s66',0),(20,8,'s66',2048)],12,pre=s.xt_pre(24,9))
        A(f'v_lshlrev_b32 v9, 3, v0\nds_write_b64 v9, v[16:17] offset:{L_Q}\nds_write_b64 v9, v[20:21] offset:{L_Q+512}')
        s.xt_eval(24,12)
        A(f's_add_u32 s9, s{sFast}, 1')
        s.setflag(F_Q,8,10,val='s9')
        s.stamp(4,vST)
        A(f'{dn}:')
    def final_sum(s, O):
        A=s.A
        for r in range(4):
            A(f'v_add_f32 v{O+r}, v{O+r}, v{O+4+r}\nv_add_f32 v{O+8+r}, v{O+8+r}, v{O+12+r}')
        for r in range(4):
            A(f'v_add_f32 v{O+r}, v{O+r}, v{O+8+r}')
    def final_tile(s, O, G):
        s.final_sum(O)
        s.A(f'v_cvt_pk_bf16_f32 v{G}, v{O}, v{O+1}\nv_cvt_pk_bf16_f32 v{G+1}, v{O+2}, v{O+3}')
    def part_read_list(s, O, va):
        return [f'ds_read_b128 v[{O+4*w}:{O+4*w+3}], v{va} offset:{512*w}' for w in range(4)]
    def ln_apply(s, X, sm, srs, t):
        A=s.A
        for r in range(4): A(f'v_sub_f32 v{X+r}, v{X+r}, v{sm}')
        s.round4(X,t)
        for r in range(4): A(f'v_mul_f32 v{X+r}, v{X+r}, v{srs}')
        s.round4(X,t)
    def mod_apply(s, X, C1, SH, t):
        A=s.A
        for r in range(4): A(f'v_mul_f32 v{X+r}, v{X+r}, v{C1+r}')
        s.round4(X,t)
        for r in range(4): A(f'v_add_f32 v{X+r}, v{X+r}, v{SH+r}')
        A(f'v_cvt_pk_bf16_f32 v{t}, v{X}, v{X+1}\nv_cvt_pk_bf16_f32 v{t+1}, v{X+2}, v{X+3}')
    def ln_final(s, mean, var, t):
        A=s.A
        s.round1(mean,t); s.round1(var,t)
        A(f'v_add_f32 v{var}, 0x3727c5ac, v{var}')
        s.round1(var,t)
        A(f'v_sqrt_f32 v{var}, v{var}')
        s.round1(var,t)
        A(f'v_rcp_f32 v{var}, v{var}')
    def silu4(s, X, t):
        A=s.A
        for r in range(4): A(f'v_mul_f32 v{t+r}, s{sLog2e}, v{X+r}')
        for r in range(4): A(f'v_exp_f32 v{t+r}, -v{t+r}')
        for r in range(4): A(f'v_add_f32 v{t+r}, 1.0, v{t+r}')
        for r in range(4): A(f'v_rcp_f32 v{t+r}, v{t+r}')
        for r in range(4): A(f'v_mul_f32 v{X+r}, v{X+r}, v{t+r}')
    def gate(s, g):
        if g=='K': s.waitflags4(F_K,8)
        elif g=='KI': s.waitflags4(F_KI,8)

    def tile(s):
        A=s.A; o=s.o
        RAW=64; T=128; ACC=32; R=16
        vST=255
        A('L_tile:')
        if s.prof: A(f'v_mov_b32 v{vST}, 0')
        s.stamp(0,vST)
        s.tile_consts()
        s.post_kernarg()
        A(f's_cmp_lt_u32 s{sI}, {I_MF}\ns_cbranch_scc1 L_mf')
        A(f's_cmp_lt_u32 s{sI}, {I_WQ}\ns_cbranch_scc1 L_wq')
        A(f's_cmp_lt_u32 s{sI}, {I_WO}\ns_cbranch_scc1 L_wo')
        A(f's_cmp_lt_u32 s{sI}, {I_MR}\ns_cbranch_scc1 L_mr')
        A(f's_cmp_lt_u32 s{sI}, {I_FFN}\ns_cbranch_scc1 L_ffn')
        s.get_tag()
        A('s_branch L_qpoll')

        A('L_mf:')
        s.srd(56,pC,2048); s.srd(48,pWM,512*6144)
        A(f's_lshl_b32 s65, s{sG}, 1\ns_and_b32 s8, s{sI}, 1\ns_add_u32 s65, s65, s8\ns_lshr_b32 s69, s{sI}, 1')
        A(f's_lshl_b32 s68, s69, 8\ns_lshl_b32 s8, s{sTW}, 6\ns_add_u32 s68, s68, s8')
        A('v_bfe_u32 v8, v0, 4, 1\nv_and_b32 v9, 15, v0\nv_lshlrev_b32 v10, 10, v8\nv_lshlrev_b32 v11, 3, v9\nv_add_u32 v12, v10, v11\ns_lshl_b32 s8, s68, 1')
        A(f'buffer_load_dwordx2 v[14:15], v12, {SC}, s8 offen')
        s.wlane(2,6144)
        A(f's_mul_i32 s67, s68, 6144\ns_lshl_b32 s8, s65, 7\ns_add_u32 s67, s67, s8')
        s.wloads(SA,2,67,list(range(8)),6144,RAW)
        s.setflag(F_G,8,9,swave=sTW)
        A(f's_mul_i32 s8, s{sTW}, 640\ns_add_u32 s8, s8, {L_ACT}')
        A(f'v_bfe_u32 v8, v0, 4, 1\nv_mul_u32_u24 v10, {BSTR}, v8\nv_and_b32 v9, 15, v0\nv_lshlrev_b32 v11, 3, v9\nv_add3_u32 v3, v10, v11, s8')
        s.get_tag()
        A('s_waitcnt vmcnt(8)')
        s.unpack2(14,8,9); s.unpack2(15,10,11)
        s.silu4(8,16)
        A('v_cvt_pk_bf16_f32 v12, v8, v9\nv_cvt_pk_bf16_f32 v13, v10, v11')
        A('ds_write_b64 v3, v[12:13]')
        A(f'v_and_b32 v200, 31, v0\nv_lshlrev_b32 v200, 4, v200\nv_add_u32 v201, {L_PART}, v200')
        A(f's_lshl_b32 s66, s65, 10\ns_lshl_b32 s8, s69, 9\ns_add_u32 s66, s66, s8\ns_add_u32 s66, s66, {hex(WS_MF)}')
        A(f'v_mov_b32 v202, s{sT}')
        A('s_mov_b32 s70, 0x03020104\ns_mov_b32 s71, 0x03020105\ns_mov_b32 s72, 0x03020106\ns_mov_b32 s73, 0x03020107')
        A('s_waitcnt vmcnt(0)')
        s.stamp(1,vST)
        s.transpose(RAW,T)
        A('s_waitcnt lgkmcnt(0)')
        s.mm(4,1,T,8,ACC,R)
        s.part_write(R,6)
        s.setflag(F_T1,8,9,swave=sTW)
        A(f's_cmp_lg_u32 s{sTW}, 0\ns_cbranch_scc1 L_tail')
        s.waitflags4(F_T1,8,extra=s.part_read_list(32,201))
        s.final_sum(32)
        for r in range(4): A(f'v_perm_b32 v{16+r}, v202, v{32+r}, s{70+r}')
        A('s_mov_b32 exec_hi, 0')
        A(f'buffer_store_dwordx4 v[16:19], v200, {WS}, s66 offen sc1')
        A('s_mov_b32 exec_hi, -1')
        s.stamp(3,vST)
        A('s_branch L_qpoll')

        A('L_wq:')
        s.srd(56,pX,2048); s.srd(48,pWQ,512*8192)
        A(f'v_lshrrev_b32 v8, 5, v0\nv_and_b32 v9, 31, v0\nv_lshlrev_b32 v10, 10, v8\nv_lshlrev_b32 v11, 3, v9\ns_lshl_b32 s8, s{sTW}, 8\nv_add3_u32 v12, v10, v11, s8\nv_lshlrev_b32 v11, 5, v9\nv_add_u32 v13, v10, v11')
        A(f'buffer_load_dwordx2 v[14:15], v12, {SC}, 0 offen\nbuffer_load_dwordx4 v[16:19], v13, {SC}, 0 offen\nbuffer_load_dwordx4 v[20:23], v13, {SC}, 0 offen offset:16')
        s.wlane(2,8192)
        A(f's_sub_u32 s69, s{sI}, {I_MF}')
        A(f's_mul_i32 s65, s{sTW}, {128*8192}\ns_lshl_b32 s8, s{sG}, 10\ns_lshl_b32 s9, s69, 7\ns_add_u32 s65, s65, s8\ns_add_u32 s65, s65, s9')
        s.wloads(SA,2,65,[64*blk+ii for blk in range(2) for ii in range(8)],8192,RAW)
        A('s_waitcnt vmcnt(16)')
        for k in range(8): s.unpack2(16+k, 32+2*k, 33+2*k)
        A('v_add_f32 v48, v32, v33')
        for k in range(2,16): A(f'v_add_f32 v48, v48, v{32+k}')
        s.rowsum16([48]); s.swap16([48],[49])
        A('v_mul_f32 v48, 0x3b000000, v48')
        for k in range(16): A(f'v_sub_f32 v{32+k}, v{32+k}, v48')
        A('v_mul_f32 v50, v32, v32')
        for k in range(1,16): A(f'v_fmac_f32 v50, v{32+k}, v{32+k}')
        s.rowsum16([50]); s.swap16([50],[49])
        A('v_mul_f32 v50, 0x3b000000, v50')
        s.ln_final(48,50,49)
        s.unpack2(14,8,9); s.unpack2(15,10,11)
        s.ln_apply(8,48,50,12)
        A('v_bfe_u32 v12, v0, 4, 1\nv_lshlrev_b32 v12, 10, v12\nv_lshrrev_b32 v13, 5, v0\nv_lshlrev_b32 v13, 8, v13\nv_and_b32 v14, 15, v0\nv_lshlrev_b32 v14, 4, v14\nv_add3_u32 v202, v12, v13, v14')
        A(f's_lshl_b32 s66, s{sTW}, 11\ns_add_u32 s66, s66, {hex(WS_MF)}\ns_add_u32 s67, s66, {8*1024}')
        A('s_mov_b32 s70, 0x0c0c0400\ns_mov_b32 s71, 0x04000c0c\ns_mov_b32 s72, 0xffffff00')
        s.sF4a=70; s.sF4b=71
        s.xt_setup(203)
        s.get_tag()
        A('s_waitcnt vmcnt(0)')
        s.stamp(1,vST)
        s.transpose(RAW,T); s.transpose(RAW+32,T+32)
        s.poll([],12,f4=[(16,202,'s66',0),(20,202,'s66',512),(24,202,'s67',0),(28,202,'s67',512)],pre=s.xt_pre(32,203))
        s.setflag(F_G,36,37,swave=sTW)
        s.stamp(2,vST)
        s.xt_eval(32,12)
        for r in range(16): A(f'v_and_b32 v{16+r}, s72, v{16+r}')
        for r in range(4): A(f'v_add_f32 v{16+r}, v{16+r}, v{20+r}\nv_add_f32 v{28+r}, v{28+r}, v{24+r}')
        s.round4(16,12)
        s.round4(28,12)
        for r in range(4): A(f'v_add_f32 v{28+r}, 1.0, v{28+r}')
        s.round4(28,12)
        s.mod_apply(8,28,16,12)
        A('ds_write_b64 v3, v[12:13]')
        A(f'v_and_b32 v200, 31, v0\nv_lshlrev_b32 v200, 4, v200\nv_add_u32 v201, {L_PART}, v200')
        A(f's_lshl_b32 s66, s{sG}, 12\ns_lshl_b32 s8, s69, 9\ns_add_u32 s66, s66, s8\ns_add_u32 s66, s66, {hex(WS_Q)}')
        A('s_waitcnt lgkmcnt(0)')
        s.mm(4,2,T,8,ACC,R)
        s.part_write(R,6)
        s.setflag(F_T1,8,9,swave=sTW)
        A(f's_cmp_lg_u32 s{sTW}, 0\ns_cbranch_scc1 L_tail')
        A(f'v_mov_b32 v18, 0\nv_mov_b32 v19, s{sT}')
        s.waitflags4(F_T1,8,extra=s.part_read_list(32,201))
        s.final_tile(32,16)
        A('s_mov_b32 exec_hi, 0')
        s.gstore(f'buffer_store_dwordx4 v[16:19], v200, {WS}, s66 offen')
        A('s_mov_b32 exec_hi, -1')
        s.stamp(3,vST)
        A('s_branch L_qpoll')

        A('L_mr:')
        s.srd(56,pC,2048); s.srd(48,pWM,512*6144)
        A(f's_lshl_b32 s65, s{sG}, 2\ns_add_u32 s65, s65, s{sI}\ns_sub_u32 s65, s65, {I_WO-16}')
        A(f'v_lshrrev_b32 v8, 5, v0\nv_and_b32 v9, 31, v0\nv_lshlrev_b32 v10, 10, v8\nv_lshlrev_b32 v11, 3, v9\ns_lshl_b32 s8, s{sTW}, 8\nv_add3_u32 v12, v10, v11, s8')
        A(f'buffer_load_dwordx2 v[60:61], v12, {SC}, 0 offen')
        s.wlane(2,6144)
        A(f's_mul_i32 s67, s{sTW}, {128*6144}\ns_lshl_b32 s8, s65, 7\ns_add_u32 s67, s67, s8')
        s.get_tag()
        if o['gate_mr']!='start':
            s.qpoll(vST); s.gate(o['gate_mr'])
        s.wloads(SA,2,67,[64*blk+ii for blk in range(2) for ii in range(8)],6144,RAW,stmp=68,thr=o['thr_w'])
        if o['gate_mr']=='start': s.qpoll(vST)
        A('s_waitcnt vmcnt(16)')
        s.unpack2(60,8,9); s.unpack2(61,10,11)
        s.silu4(8,16)
        A('v_cvt_pk_bf16_f32 v12, v8, v9\nv_cvt_pk_bf16_f32 v13, v10, v11')
        A('ds_write_b64 v3, v[12:13]')
        A('s_waitcnt vmcnt(0)')
        s.stamp(1,vST)
        s.transpose(RAW,T); s.transpose(RAW+32,T+32)
        A('s_waitcnt lgkmcnt(0)')
        s.mm(4,2,T,8,ACC,R)
        s.part_write(R,6)
        s.setflag(F_T1,8,9,swave=sTW)
        A(f's_cmp_lg_u32 s{sTW}, 0\ns_cbranch_scc1 L_tail')
        A(f'v_and_b32 v13, 31, v0\nv_lshlrev_b32 v13, 4, v13\nv_add_u32 v14, {L_PART}, v13')
        s.waitflags4(F_T1,8,extra=s.part_read_list(32,14))
        s.final_tile(32,16)
        A(f'v_mov_b32 v18, 0\nv_mov_b32 v19, s{sT}')
        A(f's_lshl_b32 s66, s65, 9\ns_add_u32 s66, s66, {hex(WS_MOD)}')
        A('s_mov_b32 exec_hi, 0')
        A(f'buffer_store_dwordx4 v[16:19], v13, {WS}, s66 offen sc1')
        A('s_mov_b32 exec_hi, -1')
        s.stamp(3,vST)
        A('s_branch L_tdone')

        A('L_wo:')
        s.srd(48,pWO,4096*1024)
        A('v_bfe_u32 v10, v0, 4, 1\nv_lshlrev_b32 v10, 6, v10\nv_bfe_u32 v11, v0, 3, 1\nv_lshlrev_b32 v11, 1, v11\nv_lshrrev_b32 v12, 5, v0\nv_add3_u32 v10, v10, v11, v12\nv_lshlrev_b32 v10, 10, v10\nv_and_b32 v11, 7, v0\nv_lshlrev_b32 v11, 4, v11\nv_add_u32 v2, v10, v11')
        A(f's_sub_u32 s65, s{sI}, {I_WQ}\ns_lshr_b32 s65, s65, 1\ns_and_b32 s69, s{sI}, 1\ns_lshl_b32 s68, s{sG}, 2\ns_add_u32 s68, s68, s65')
        A(f's_lshl_b32 s67, s68, 17\ns_lshl_b32 s8, s69, 9\ns_add_u32 s67, s67, s8\ns_lshl_b32 s8, s{sTW}, 7\ns_add_u32 s67, s67, s8')
        s.get_tag()
        if o['gate_wo']!='start':
            s.qpoll(vST); s.gate(o['gate_wo'])
        s.stamp(2,vST)
        s.wloads(SA,2,67,[32*(ii>>2)+8*(ii&3)+4*blk for blk in range(2) for ii in range(8)],1024,RAW,stmp=70,thr=o['thr_w'])
        if o['gate_wo']=='start': s.qpoll(vST)
        A('s_waitcnt vmcnt(8)')
        s.transpose(RAW,T)
        A('s_waitcnt vmcnt(0)')
        s.stamp(1,vST)
        s.transpose(RAW+32,T+32)
        A('s_branch L_wo2')

        A('L_ffn:')
        A(f's_mul_i32 s65, s{sG}, 7\ns_add_u32 s65, s65, s{sI}\ns_sub_u32 s65, s65, {I_MR}')
        s.srd(48,pW1,512*3584); s.srd(52,pW3,512*3584); s.srd(56,pW2,1792*1024)
        s.wlane(2,3584,cmask=3)
        A(f's_mul_i32 s67, s{sTW}, {128*3584}\ns_lshl_b32 s8, s65, 6\ns_add_u32 s67, s67, s8')
        A('v_lshrrev_b32 v10, 4, v0\nv_lshlrev_b32 v10, 13, v10\nv_and_b32 v11, 15, v0\nv_lshlrev_b32 v11, 4, v11\nv_add_u32 v1, v10, v11')
        A(f's_lshl_b32 s69, s65, 15\ns_lshl_b32 s8, s{sTW}, 8\ns_add_u32 s69, s69, s8')
        A('s_mov_b32 s72, 0x0f0f0f0f\ns_mov_b32 s73, 0x0f0f0f0f\ns_mov_b32 s74, 0xf0f0f0f0\ns_mov_b32 s75, 0xf0f0f0f0')
        s.get_tag()
        s.qpoll(vST)
        s.gate(o['gate_ffn'])
        s.stamp(2,vST)
        for blk in range(2):
            A('s_mov_b64 exec, s[72:73]')
            s.wloads(SA,2,67,[64*blk+ii for ii in range(8)],3584,RAW+32*blk,stmp=68)
            A('s_mov_b64 exec, s[74:75]')
            s.wloads(SB,2,67,[64*blk+ii for ii in range(8)],3584,RAW+32*blk,stmp=68)
        A('s_mov_b64 exec, -1')
        s.wloads(SC,1,69,list(range(8)),1024,192,stmp=68)
        A('s_waitcnt vmcnt(24)')
        s.transpose(RAW,T)
        A('s_waitcnt vmcnt(8)')
        s.transpose(RAW+32,T+32)
        A('s_waitcnt vmcnt(0)')
        s.stamp(1,vST)
        s.transpose(192,RAW)
        A('s_branch L_ffn2')

        A('L_qpoll:')
        s.qpoll(vST)
        A('s_branch L_tdone')
        A('L_tail:')
        A(f's_cmp_eq_u32 s{sTW}, 1\ns_cbranch_scc1 L_b1\ns_branch L_tdone')

        A('L_wo2:')
        A(f's_and_b32 s70, s{sTW}, 1\ns_lshr_b32 s71, s{sTW}, 1')
        A(f's_lshl_b32 s72, s68, 1\ns_add_u32 s72, s72, s70\ns_mul_i32 s72, s72, {16*576}\ns_add_u32 s72, s72, {hex(WS_AS)}')
        A(f's_lshl_b32 s8, s71, 8\ns_add_u32 s73, s72, s8\ns_add_u32 s74, s73, {2*2304}')
        A('v_lshrrev_b32 v8, 4, v0\nv_and_b32 v9, 15, v0\nv_mul_u32_u24 v10, 576, v8\nv_lshlrev_b32 v11, 4, v9\nv_add_u32 v12, v10, v11')
        A('v_and_b32 v11, 3, v0\nv_mul_u32_u24 v11, 2304, v11\nv_add3_u32 v13, v10, v11, 0\nv_add_u32 v13, 512, v13')
        A(f's_mul_i32 s8, s70, {BSTR}\ns_lshl_b32 s9, s71, 7\ns_add_u32 s8, s8, s9\ns_add_u32 s8, s8, {L_OACT}\nv_lshlrev_b32 v14, 3, v9\nv_add_u32 v14, s8, v14')
        A(f'v_add_u32 v15, {L_OACT}, v7')
        A(f'v_and_b32 v2, 7, v0\nv_mul_u32_u24 v2, 48, v2\ns_lshl_b32 s8, s69, 5\ns_lshl_b32 s9, s{sTW}, 3\ns_add_u32 s8, s8, s9\ns_mul_i32 s8, s8, 48\ns_mul_i32 s75, s68, 3072\ns_add_u32 s75, s75, s8\ns_add_u32 s75, s75, {hex(WS_AO)}')
        A('v_mov_b32 v56, v12')
        s.waitflags4(F_O,8)
        s.poll([(32,56,'s73',0),(36,56,'s73',2304),(40,56,'s74',0),(44,56,'s74',2304),(48,13,'s72',0)],8)
        s.stamp(5,vST)
        A('v_mov_b32 v50, v48')
        A('v_max_f32_dpp v50, v50, v50 quad_perm:[1,0,3,2] row_mask:0xf bank_mask:0xf\nv_max_f32_dpp v50, v50, v50 quad_perm:[2,3,0,1] row_mask:0xf bank_mask:0xf')
        s.swap16([50],[51],'v_max_f32'); s.swap32([50],[51],'v_max_f32')
        A(f'v_sub_f32 v48, v48, v50\nv_mul_f32 v48, s{sLog2e}, v48\nv_exp_f32 v48, v48')
        A('v_mul_f32 v49, v48, v49')
        A('v_add_f32_dpp v49, v49, v49 quad_perm:[1,0,3,2] row_mask:0xf bank_mask:0xf\nv_add_f32_dpp v49, v49, v49 quad_perm:[2,3,0,1] row_mask:0xf bank_mask:0xf')
        s.swap16([49],[51]); s.swap32([49],[51])
        A('v_rcp_f32 v49, v49\nv_mul_f32 v48, v48, v49')
        for q in range(4):
            s.unpack2(32+4*q, 16, 17); s.unpack2(33+4*q, 18, 19)
            for e in range(4):
                op='v_mul_f32_dpp' if q==0 else 'v_fmac_f32_dpp'
                A(f'{op} v{20+e}, v48, v{16+e} quad_perm:[{q},{q},{q},{q}] row_mask:0xf bank_mask:0xf')
        s.swap16([20,21,22,23],[16,17,18,19]); s.swap32([20,21,22,23],[16,17,18,19])
        A('v_cvt_pk_bf16_f32 v16, v20, v21\nv_cvt_pk_bf16_f32 v17, v22, v23')
        A('s_mov_b64 exec, 0xffff\nds_write_b64 v14, v[16:17]\ns_mov_b64 exec, -1')
        s.setflag(F_T2,8,9,swave=sTW)
        s.waitflags4(F_T2,8)
        s.mm(15,2,T,8,ACC,R)
        s.publishR(lambda b,j: R+8*b+j,32,2,'s75','0xff')
        s.stamp(6,vST)
        A('s_branch L_tdone')

        A('L_b1:')
        A(f's_sub_u32 s8, s{sI}, 8\ns_cmp_ge_u32 s{sI}, {I_WO}\ns_cselect_b32 s65, s8, s{sI}')
        s.srd(56,pX,2048); s.srd(60,pOUT,2048)
        A('v_and_b32 v8, 3, v0\nv_bfe_u32 v9, v0, 2, 2\nv_lshrrev_b32 v10, 4, v0\nv_lshrrev_b32 v11, 5, v0\nv_bfe_u32 v12, v0, 4, 1')
        A('v_lshlrev_b32 v13, 10, v11\nv_lshlrev_b32 v14, 4, v8\nv_lshlrev_b32 v15, 3, v12\nv_add3_u32 v13, v13, v14, v15\ns_lshl_b32 s8, s65, 6\nv_add_u32 v2, s8, v13')
        A(f'buffer_load_dwordx2 v[16:17], v2, {SC}, 0 offen')
        A('v_lshlrev_b32 v13, 8, v11\nv_lshlrev_b32 v14, 5, v8\nv_lshlrev_b32 v15, 4, v12\nv_add3_u32 v13, v13, v14, v15\ns_and_b32 s8, s65, 1\ns_lshl_b32 s8, s8, 7\nv_add_u32 v3, s8, v13')
        A(f's_lshr_b32 s8, s65, 1\ns_lshl_b32 s8, s8, 9\ns_add_u32 s66, s8, {hex(WS_MOD+16*512)}\ns_add_u32 s67, s66, {24*512}')
        A('v_lshlrev_b32 v13, 11, v11\nv_lshlrev_b32 v14, 5, v8\nv_lshlrev_b32 v15, 4, v12\nv_add3_u32 v13, v13, v14, v15\ns_lshl_b32 s8, s65, 7\nv_add_u32 v4, s8, v13')
        A(f's_lshl_b32 s68, s{sG}, 12\ns_add_u32 s68, s68, {hex(WS_X1)}')
        A('v_lshlrev_b32 v13, 8, v11\ns_lshl_b32 s8, s65, 4\nv_add_u32 v5, s8, v13')
        A(f's_lshl_b32 s69, s{sG}, 9\ns_add_u32 s69, s69, {hex(WS_XS)}')
        A('v_lshlrev_b32 v13, 2, v10\nv_add_u32 v13, v13, v9\nv_mul_u32_u24 v13, 3072, v13\nv_mul_u32_u24 v14, 48, v8\ns_mul_i32 s8, s65, 192\nv_add3_u32 v6, v13, v14, s8')
        A(f's_mov_b32 s70, {hex(WS_AO)}\ns_mov_b32 s71, {hex(WS_AO+16*3072)}')
        A(f's_mov_b32 s72, {hex(WS_YO)}\ns_mov_b32 s73, {hex(WS_YO+16*3072)}\ns_mov_b32 s74, {hex(WS_YO+32*3072)}\ns_mov_b32 s75, {hex(WS_YO+48*3072)}')
        SEL=64
        A('v_bfe_u32 v13, v0, 1, 3\nv_and_b32 v14, 1, v0\nv_mov_b32 v15, 0x3f80\nv_mov_b32 v7, 0x3f800000\nv_cmp_eq_u32 vcc, 1, v14\nv_cndmask_b32 v15, v15, v7, vcc')
        for kind in range(3):
            for pp in range(4):
                x=3*kind+pp
                d=SEL+4*kind+pp
                if pp==3 or x>7: A(f'v_mov_b32 v{d}, 0')
                else: A(f'v_cmp_eq_u32 vcc, {x}, v13\nv_cndmask_b32 v{d}, 0, v15, vcc')
        s.poll([(20,3,'s66',0),(24,3,'s67',0)],13)
        s.unpack2(16,28,29); s.unpack2(17,30,31)
        s.unpack2(20,32,33); s.unpack2(21,34,35)
        s.unpack2(24,36,37); s.unpack2(25,38,39)
        s.stamp(5,vST)
        GA=80
        def gather_reduce(bases, nfull):
            full=[(GA+12*st+4*k,6,bases[st],16*k) for st in range(nfull) for k in range(3)]
            mk=[(GA+12*st+4*k,6,bases[st],16*k) for st in range(nfull,len(bases)) for k in range(3)]
            for (d,_,_,_) in mk:
                A(f'v_mov_b32 v{d}, 0\nv_mov_b32 v{d+1}, 0\nv_mov_b32 v{d+2}, 0\nv_mov_b32 v{d+3}, s{sT}')
            s.poll(full,13,masked=mk)
            n=3*len(bases)
            for k in range(n): A(f'v_mov_b32 v{GA+4*k+3}, 0')
            for k in range(n):
                acc=40 if k%2==0 else 44
                c='0' if k<2 else f'v[{acc}:{acc+3}]'
                A(f'v_mfma_f32_16x16x32_bf16 v[{acc}:{acc+3}], v[{SEL+4*(k%3)}:{SEL+4*(k%3)+3}], v[{GA+4*k}:{GA+4*k+3}], {c}')
            for r in range(4): A(f'v_add_f32 v{40+r}, v{40+r}, v{44+r}')
            for sh in (4,8):
                for r in range(4):
                    A(f'v_add_f32_dpp v{40+r}, v{40+r}, v{40+r} row_ror:{sh} row_mask:0xf bank_mask:0xf')
        s.waitflags4(F_O,48)
        s.waitflag1(F_Q,48); s.fast_from_flag(48)
        A(f'v_mov_b32 v58, 0\nv_mov_b32 v59, s{sT}')
        gather_reduce(['s70','s71'],2)
        s.stamp(6,vST)
        s.round4(40,13)
        for r in range(4): A(f'v_mul_f32 v{40+r}, v{32+r}, v{40+r}')
        s.round4(40,13)
        for r in range(4): A(f'v_add_f32 v{40+r}, v{28+r}, v{40+r}')
        A('v_cvt_pk_bf16_f32 v44, v40, v41\nv_cvt_pk_bf16_f32 v45, v42, v43')
        A(f'v_mov_b32 v46, 0\nv_mov_b32 v47, s{sT}')
        A('s_mov_b32 s10, 0x000f000f\ns_mov_b32 s11, 0x000f000f\ns_mov_b64 exec, s[10:11]')
        s.gstore(f'buffer_store_dwordx4 v[44:47], v4, {WS}, s68 offen')
        A('s_mov_b64 exec, -1')
        s.unpack2(44,28,29); s.unpack2(45,30,31)
        A('v_add_f32 v56, v28, v29\nv_add_f32 v57, v30, v31\nv_add_f32 v56, v56, v57')
        A('v_mul_f32 v57, v28, v28\nv_fmac_f32 v57, v29, v29\nv_fmac_f32 v57, v30, v30\nv_fmac_f32 v57, v31, v31')
        for qp in ('[1,0,3,2]','[2,3,0,1]'):
            for r in (56,57): A(f'v_add_f32_dpp v{r}, v{r}, v{r} quad_perm:{qp} row_mask:0xf bank_mask:0xf')
        s.swap16([56,57],[52,53])
        A('s_mov_b32 s10, 1\ns_mov_b32 s11, 1\ns_mov_b64 exec, s[10:11]')
        s.gstore(f'buffer_store_dwordx4 v[56:59], v5, {WS}, s69 offen')
        A('s_mov_b64 exec, -1')
        s.stamp(7,vST)
        A(f's_and_b32 s8, s65, 7\ns_cmp_lg_u32 s8, s{sG}\ns_cbranch_scc1 L_tdone')
        gather_reduce(['s72','s73','s74','s75'],3)
        s.stamp(8,vST)
        s.round4(40,13)
        for r in range(4): A(f'v_mul_f32 v{40+r}, v{36+r}, v{40+r}')
        s.round4(40,13)
        for r in range(4): A(f'v_add_f32 v{40+r}, v{28+r}, v{40+r}')
        A('v_cvt_pk_bf16_f32 v44, v40, v41\nv_cvt_pk_bf16_f32 v45, v42, v43')
        A('s_mov_b32 s10, 0x000f000f\ns_mov_b32 s11, 0x000f000f\ns_mov_b64 exec, s[10:11]')
        A(f'buffer_store_dwordx2 v[44:45], v2, {SD}, 0 offen')
        A('s_mov_b64 exec, -1')
        A('s_cmp_lg_u32 s65, 0\ns_cbranch_scc1 L_tdone')
        A(f'v_mov_b32 v44, s{sT}\nv_mov_b32 v45, 0\ns_mov_b64 exec, 1\nbuffer_store_dword v44, v45, {WS}, 0 offen sc1\ns_mov_b64 exec, -1')
        s.stamp(9,vST)
        A('s_branch L_tdone')

        A('L_ffn2:')
        A(f's_lshl_b32 s66, s{sTW}, 10\ns_add_u32 s66, s66, {hex(WS_MOD+24*512)}\ns_add_u32 s67, s66, {8*512}')
        s.poll([(16,5,'s66',0),(20,5,'s67',0)],12)
        s.unpack2(16,24,25); s.unpack2(17,26,27)
        s.unpack2(20,28,29); s.unpack2(21,30,31)
        for r in range(4): A(f'v_add_f32 v{28+r}, 1.0, v{28+r}')
        s.round4(28,12)
        A(f'v_lshrrev_b32 v8, 5, v0\nv_and_b32 v9, 31, v0\nv_lshlrev_b32 v10, 11, v8\nv_lshlrev_b32 v11, 4, v9\ns_lshl_b32 s8, s{sTW}, 9\nv_add3_u32 v13, v10, v11, s8')
        A('v_lshlrev_b32 v10, 8, v8\nv_and_b32 v11, 15, v0\nv_lshlrev_b32 v11, 4, v11\nv_add_u32 v14, v10, v11')
        A(f's_lshl_b32 s70, s{sG}, 12\ns_add_u32 s70, s70, {hex(WS_X1)}\ns_lshl_b32 s71, s{sG}, 9\ns_add_u32 s71, s71, {hex(WS_XS)}')
        A(f'v_and_b32 v96, 31, v0\nv_lshlrev_b32 v96, 4, v96\nv_add_u32 v2, {L_PART}, v96')
        A(f's_lshl_b32 s8, s{sTW}, 8\ns_add_u32 s8, s8, {L_H2}\nv_lshrrev_b32 v97, 1, v96\nv_add_u32 v97, s8, v97')
        A('v_and_b32 v10, 1, v0\nv_lshlrev_b32 v10, 7, v10\nv_lshrrev_b32 v12, 4, v0\nv_lshlrev_b32 v12, 4, v12\nv_add3_u32 v98, v10, v12, s8')
        A(f'v_and_b32 v99, 15, v0\nv_mul_u32_u24 v99, 48, v99\ns_mul_i32 s8, s{sTW}, {16*48}\ns_mul_i32 s75, s65, 3072\ns_add_u32 s75, s75, s8\ns_add_u32 s75, s75, {hex(WS_YO)}')
        s.stamp(5,vST)
        s.waitflags4(F_O,8)
        s.poll([(16,13,'s70',0),(20,14,'s71',0)],10)
        s.stamp(6,vST)
        s.rowsum16([20,21])
        A('v_mul_f32 v20, 0x3b000000, v20\nv_mul_f32 v21, 0x3b000000, v21\nv_fma_f32 v21, -v20, v20, v21\nv_max_f32 v21, 0, v21')
        s.ln_final(20,21,12)
        s.unpack2(16,8,9); s.unpack2(17,10,11)
        s.ln_apply(8,20,21,12)
        s.mod_apply(8,28,24,12)
        A('ds_write_b64 v3, v[12:13]\ns_waitcnt lgkmcnt(0)')
        s.mm(4,2,T,8,ACC,R)
        s.part_write(R,6)
        s.setflag(F_T1,8,9,swave=sTW)
        s.waitflags4(F_T1,8,extra=s.part_read_list(32,2))
        s.stamp(7,vST)
        s.final_sum(32)
        s.round4(32,12)
        for r in range(4): A(f'v_mov_b32_dpp v{28+r}, v{32+r} row_shl:8 row_mask:0xf bank_mask:0xf bound_ctrl:0')
        s.silu4(32,16)
        s.round4(32,12)
        for r in range(4): A(f'v_mul_f32 v{32+r}, v{32+r}, v{28+r}')
        A('v_cvt_pk_bf16_f32 v12, v32, v33\nv_cvt_pk_bf16_f32 v13, v34, v35')
        A('ds_write_b64 v97, v[12:13]\ns_waitcnt lgkmcnt(0)')
        s.mm(98,1,RAW,8,ACC,None)
        s.publishR(lambda b,j: ACC+4*j+b,16,99,'s75','0xffff')
        s.stamp(9,vST)
        A('L_tdone:')
        s.stamp_flush(vST, 8)
        s.endpgm()

    def build(s):
        A=s.A
        s.prologue(); s.kv(); s.tile()
        A('L_exit:\ns_endpgm')
        body,nn=fix_hazards(A.L)
        hdr=[f'; @launch grid=(256,1,1) block=(512,1,1) lds={L_SIZE}',
             '.amdgcn_target "amdgcn-amd-amdhsa--gfx950"','.text',f'.globl {NAME}_kernel','.p2align 8',f'.type {NAME}_kernel,@function',f'{NAME}_kernel:']
        ftr=f'''.section .rodata,"a"
.p2align 6
.amdhsa_kernel {NAME}_kernel
  .amdhsa_next_free_vgpr 256
  .amdhsa_next_free_sgpr 102
  .amdhsa_accum_offset 256
  .amdhsa_group_segment_fixed_size 0
  .amdhsa_kernarg_size 112
  .amdhsa_user_sgpr_count 2
  .amdhsa_user_sgpr_kernarg_segment_ptr 1
  .amdhsa_system_sgpr_workgroup_id_x 1
.end_amdhsa_kernel'''
        return '\n'.join(hdr+body)+'\n'+ftr+'\n', nn

def gen(out, prof=False, **opts):
    k=K(prof=prof,opts=opts)
    txt,nn=k.build()
    open(out,'w').write(txt)
    return txt.count('\n'),nn

if __name__=='__main__':
    import argparse
    ap=argparse.ArgumentParser()
    ap.add_argument('-o',default='k3.s'); ap.add_argument('--prof',action='store_true')
    ap.add_argument('opts',nargs='*')
    a=ap.parse_args()
    opts={}
    for kv in a.opts:
        k,v=kv.split('='); opts[k]=int(v) if v.lstrip('-').isdigit() else v
    print('written',a.o,gen(a.o,a.prof,**opts))
```

```python
import sys
sys.path.insert(0,'gen')
from asmlib import *
NAME='adaLN_cond__sliding_block_cached__glu_gated_swiglu__decode'

WS_MOD  = 0x1000
WS_Q    = 0x8000
WS_AS   = 0x10000
WS_AO   = 0xA0000
WS_X1   = 0xB8000
WS_XS   = 0xC0000
WS_XT   = 0xC1000
WS_MF   = 0xC4000
WS_YO   = 0xC8000
WS_PROF = 0x100000
WS_SIZE = 0x180000
L_Q=0x0; L_F=0x400; L_KM=0x500; L_KL=0x540; L_KO=0x600; L_ACT=0x2A00; L_PART=0x3400; L_OACT=0x3C00; L_H2=0x3E80; L_SIZE=0x4400
F_Q=0; F_M=4; F_O=8; F_T1=12; F_T2=16; F_KI=20; F_K=24; F_G=28; F_K2=32; F_P=36; F_M2=40
BSTR=384
sW=3; sG=4; sI=5; sE=6; sT=7
pX=16; pK=18; pV=20; pWQ=22; pWO=24; pW1=28; pW3=30; pW2=32; pC=34; pWM=36; pOUT=38; pDBG=40; pWS=42
WS='s[44:47]'; SA='s[48:51]'; SB='s[52:55]'; SC='s[56:59]'; SD='s[60:63]'
sTW=64; sSelLo=80; sSelHi=81; sHiMask=82; sFast=83; sCNT=84; sLog2e=85; sXCC=90
LOG2E='0x3fb8aa3b'
I_MF=2; I_BB=4; I_WQ=12; I_WO=20; I_MR=24; I_FFN=31

DEF=dict(thr=4, thr0=0, n0=0, thr_wq=4, thr0_wq=0, n0_wq=0, thr_mf=4, pre_wq=0, pre_mf=0, gate_wq='issued', g2_wq='Q', g2_mf='P', npipe_q=4, nK=15, nK2=31, thr_w=3, gate_wo='start', gate_mr='start', gate_ffn='K2', fast=1, gate_mf=1, pf=1, pf_i=24, pf_kb=24, pad=0, xdiag=0)

class K:
    def __init__(s, prof=False, opts=None):
        s.A=Asm(); s.prof=prof; s.o=dict(DEF); s.o.update(opts or {})
    def srd(s, base, ptr, size):
        A=s.A
        A(f's_mov_b32 s{base}, s{ptr}\ns_mov_b32 s{base+1}, s{ptr+1}\ns_mov_b32 s{base+2}, {hex(size)}\ns_mov_b32 s{base+3}, 0x20000')
    def stamp(s, idx, vst):
        if not s.prof: return
        s.A(f's_memrealtime s[86:87]\ns_waitcnt lgkmcnt(0)\nv_writelane_b32 v{vst}, s86, {idx}')
    def stamp_flush(s, vst, vtmp):
        if not s.prof: return
        A=s.A
        A(f's_mov_b64 exec, -1')
        A(f's_lshl_b32 s88, s2, 3\ns_add_u32 s88, s88, s{sW}\ns_lshl_b32 s88, s88, 8\ns_add_u32 s88, s88, {hex(WS_PROF)}')
        A(f'v_mbcnt_lo_u32_b32 v{vtmp}, -1, 0\nv_mbcnt_hi_u32_b32 v{vtmp}, -1, v{vtmp}\nv_lshlrev_b32 v{vtmp}, 2, v{vtmp}')
        A(f'buffer_store_dword v{vst}, v{vtmp}, {WS}, s88 offen')
    def poll(s, loads, tmp, f4=(), pre=None, masked=()):
        A=s.A; lp=A.label('poll'); dn=A.label('pdone')
        A(f'{lp}:')
        for e in (pre or []): A(e)
        for (d,va,so,imm) in list(loads)+list(f4):
            A(f'buffer_load_dwordx4 v[{d}:{d+3}], v{va}, {WS}, {so} offen offset:{imm} sc1')
        if masked:
            A('s_mov_b32 exec_hi, 0')
            for (d,va,so,imm) in masked:
                A(f'buffer_load_dwordx4 v[{d}:{d+3}], v{va}, {WS}, {so} offen offset:{imm} sc1')
            A('s_mov_b32 exec_hi, -1')
        A('s_waitcnt vmcnt(0)')
        first=True
        for (d,va,so,imm) in list(loads)+list(masked):
            if first: A(f'v_xor_b32 v{tmp}, s{sT}, v{d+3}'); first=False
            else:
                A(f'v_xor_b32 v{tmp+1}, s{sT}, v{d+3}\nv_or_b32 v{tmp}, v{tmp}, v{tmp+1}')
        for (d,va,so,imm) in f4:
            A(f'v_perm_b32 v{tmp+1}, v{d+1}, v{d}, s{s.sF4a}\nv_perm_b32 v{tmp+2}, v{d+3}, v{d+2}, s{s.sF4b}')
            A(f'v_or_b32 v{tmp+1}, v{tmp+1}, v{tmp+2}')
            if first: A(f'v_xor_b32 v{tmp}, s{sT}, v{tmp+1}'); first=False
            else: A(f'v_xor_b32 v{tmp+1}, s{sT}, v{tmp+1}\nv_or_b32 v{tmp}, v{tmp}, v{tmp+1}')
        A(f'v_cmp_ne_u32 vcc, 0, v{tmp}')
        A(f's_cbranch_vccz {dn}')
        A(f's_sub_u32 s{sCNT}, s{sCNT}, 1\ns_cbranch_scc0 {lp}\ns_mov_b32 s{sCNT}, 0')
        A(f'{dn}:')
    def setflag(s, word, vaddr_tmp, vone, swave=None, val='1'):
        A=s.A
        if swave is None:
            A(f'v_mov_b32 v{vaddr_tmp}, {L_F+4*word}')
        else:
            A(f's_lshl_b32 s8, s{swave}, 2\ns_add_u32 s8, s8, {L_F+4*word}\nv_mov_b32 v{vaddr_tmp}, s8')
        A(f'v_mov_b32 v{vone}, {val}')
        A(f's_mov_b64 s[10:11], exec\ns_mov_b64 exec, 1')
        A(f'ds_write_b32 v{vaddr_tmp}, v{vone}')
        A(f's_mov_b64 exec, s[10:11]')
    def waitflags4(s, word, vt, extra=None):
        A=s.A; lp=A.label('lw'); dn=A.label('lwd')
        A(f'v_mov_b32 v{vt+4}, {L_F+4*word}')
        A(f'{lp}:')
        A(f'ds_read_b128 v[{vt}:{vt+3}], v{vt+4}')
        for e in (extra or []): A(e)
        A('s_waitcnt lgkmcnt(0)')
        A(f'v_min3_u32 v{vt}, v{vt}, v{vt+1}, v{vt+2}\nv_min_u32 v{vt}, v{vt}, v{vt+3}')
        A(f'v_cmp_ne_u32 vcc, 0, v{vt}')
        A(f's_cbranch_vccnz {dn}')
        A(f's_sub_u32 s{sCNT}, s{sCNT}, 1\ns_cbranch_scc0 {lp}\ns_mov_b32 s{sCNT}, 0')
        A(f'{dn}:')
    def waitflag1(s, word, vt):
        A=s.A; lp=A.label('lw'); dn=A.label('lwd')
        A(f'v_mov_b32 v{vt+1}, {L_F+4*word}')
        A(f'{lp}:')
        A(f'ds_read_b32 v{vt}, v{vt+1}')
        A('s_waitcnt lgkmcnt(0)')
        A(f'v_cmp_ne_u32 vcc, 0, v{vt}')
        A(f's_cbranch_vccnz {dn}')
        A(f's_sub_u32 s{sCNT}, s{sCNT}, 1\ns_cbranch_scc0 {lp}\ns_mov_b32 s{sCNT}, 0')
        A(f'{dn}:')
    def fast_from_flag(s, vt):
        s.A(f'v_readfirstlane_b32 s{sFast}, v{vt}\ns_lshr_b32 s{sFast}, s{sFast}, 1')
    def gstore(s, text):
        A=s.A
        if not s.o['fast']:
            A(text+' sc1'); return
        l1=A.label('slow'); l2=A.label('sd')
        A(f's_cmp_eq_u32 s{sFast}, 0\ns_cbranch_scc1 {l1}')
        A(text); A(f's_branch {l2}\n{l1}:'); A(text+' sc1'); A(f'{l2}:')
    def unpack2(s, src, lo, hi):
        s.A(f'v_lshlrev_b32 v{lo}, 16, v{src}\nv_and_b32 v{hi}, s{sHiMask}, v{src}')
    def round4(s, v, t):
        A=s.A
        A(f'v_cvt_pk_bf16_f32 v{t}, v{v}, v{v+1}\nv_cvt_pk_bf16_f32 v{t+1}, v{v+2}, v{v+3}')
        s.unpack2(t, v, v+1); s.unpack2(t+1, v+2, v+3)
    def round1(s, v, t):
        A=s.A
        A(f'v_cvt_pk_bf16_f32 v{t}, v{v}, v{v}\nv_lshlrev_b32 v{v}, 16, v{t}')
    def transpose(s, raw, dst):
        A=s.A
        for jj in range(4):
            for pp in range(4):
                a=raw+(2*pp)*4+jj; b=raw+(2*pp+1)*4+jj
                A(f'v_perm_b32 v{dst+(2*jj)*4+pp}, v{b}, v{a}, s{sSelLo}')
                A(f'v_perm_b32 v{dst+(2*jj+1)*4+pp}, v{b}, v{a}, s{sSelHi}')
    def rowsum16(s, regs, op='v_add_f32'):
        A=s.A
        for sh in (8,4,2,1):
            for r in regs:
                A(f'{op}_dpp v{r}, v{r}, v{r} row_ror:{sh} row_mask:0xf bank_mask:0xf')
    def swap16(s, regs, tmps, op='v_add_f32'):
        A=s.A
        for r,t in zip(regs,tmps): A(f'v_mov_b32 v{t}, v{r}')
        for r,t in zip(regs,tmps): A(f'v_permlane16_swap_b32 v{r}, v{t}')
        for r,t in zip(regs,tmps): A(f'{op} v{r}, v{r}, v{t}')
    def swap32(s, regs, tmps, op='v_add_f32'):
        A=s.A
        for r,t in zip(regs,tmps): A(f'v_mov_b32 v{t}, v{r}')
        for r,t in zip(regs,tmps): A(f'v_permlane32_swap_b32 v{r}, v{t}')
        for r,t in zip(regs,tmps): A(f'{op} v{r}, v{r}, v{t}')
    def mm(s, actaddr, nblk, T, act, acc, R):
        A=s.A
        for blk in range(nblk):
            A(f'ds_read_b128 v[{act+4*blk}:{act+4*blk+3}], v{actaddr} offset:{128*blk}')
        for blk in range(nblk):
            A(f's_waitcnt lgkmcnt({nblk-1-blk})')
            for j in range(8):
                c = '0' if blk==0 else f'v[{acc+4*j}:{acc+4*j+3}]'
                A(f'v_mfma_f32_16x16x32_bf16 v[{acc+4*j}:{acc+4*j+3}], v[{act+4*blk}:{act+4*blk+3}], v[{T+32*blk+4*j}:{T+32*blk+4*j+3}], {c}')
        if R is None: return
        for j in range(8):
            for b in range(2):
                A(f'v_add_f32_dpp v{R+8*b+j}, v{acc+4*j+2+b}, v{acc+4*j+b} row_shl:8 row_mask:0xf bank_mask:0xf')
    def part_write(s, R, vaddr):
        A=s.A
        A('s_mov_b64 exec, 0xff')
        A(f'ds_write_b128 v{vaddr}, v[{R}:{R+3}]\nds_write_b128 v{vaddr}, v[{R+4}:{R+7}] offset:16')
        A(f'ds_write_b128 v{vaddr}, v[{R+8}:{R+11}] offset:256\nds_write_b128 v{vaddr}, v[{R+12}:{R+15}] offset:272')
        A('s_mov_b64 exec, -1')
    def publishR(s, reg, G, vaddr, soff, mask):
        A=s.A
        idx=[(0,0),(0,2),(0,4),(0,6),(1,0),(1,2),(1,4),(1,6)]
        slots=[G+0,G+1,G+2,G+4,G+5,G+6,G+8,G+9]
        A(f'v_mov_b32 v{G+10}, 0')
        A(f'v_mov_b32 v{G+3}, s{sT}\nv_mov_b32 v{G+7}, s{sT}\nv_mov_b32 v{G+11}, s{sT}')
        for (b,j),d in zip(idx,slots):
            A(f'v_cvt_pk_bf16_f32 v{d}, v{reg(b,j)}, v{reg(b,j+1)}')
        A(f's_mov_b64 exec, {mask}')
        for k in range(3):
            A(f'buffer_store_dwordx4 v[{G+4*k}:{G+4*k+3}], v{vaddr}, {WS}, {soff} offen offset:{16*k} sc1')
        A('s_mov_b64 exec, -1')
    def get_tag(s):
        s.A(f's_waitcnt lgkmcnt(0)\ns_mul_i32 s{sT}, s{sE}, 1664525\ns_add_u32 s{sT}, s{sT}, 1013904223')

    def prologue(s):
        A=s.A
        A('s_cmp_ge_u32 s2, 256\ns_cbranch_scc1 L_exit')
        if s.o['pad'] or s.o['xdiag']: A('s_memrealtime s[94:95]')
        A('s_load_dwordx16 s[16:31], s[0:1], 0\ns_load_dwordx8 s[32:39], s[0:1], 64\ns_load_dwordx4 s[40:43], s[0:1], 96')
        A(f'v_lshrrev_b32 v1, 6, v0\nv_and_b32 v0, 63, v0\nv_readfirstlane_b32 s{sW}, v1')
        A(f's_and_b32 s{sG}, s2, 7\ns_lshr_b32 s{sI}, s2, 3')
        if s.o['pf']:
            A(f's_cmp_lg_u32 s{sW}, 7\ns_cbranch_scc1 L_nopf\ns_cmp_lt_u32 s{sI}, {s.o["pf_i"]}\ns_cbranch_scc1 L_nopf')
            A(f's_getpc_b64 s[92:93]\nL_pc:\ns_sub_u32 s92, s92, L_pc-{NAME}_kernel\ns_subb_u32 s93, s93, 0')
            A('v_lshlrev_b32 v7, 7, v0')
            for k in range((s.o['pf_kb']+7)//8):
                if k: A('v_add_u32 v7, 0x2000, v7')
                A(f'v_min_u32 v4, L_exit-{NAME}_kernel, v7\nv_mov_b32 v5, s93\nv_add_co_u32 v4, vcc, s92, v4\nv_addc_co_u32 v5, vcc, 0, v5, vcc')
                A(f'global_load_dword v{250+k}, v[4:5], off')
            A('L_nopf:')
        A(f's_cmp_lg_u32 s{sW}, 0\ns_cbranch_scc1 L_nz')
        A(f'v_lshlrev_b32 v8, 2, v0\nv_mov_b32 v9, 0\nds_write_b32 v8, v9 offset:{L_F}')
        A('L_nz:')
        A(f's_mov_b32 s{sSelLo}, 0x05040100\ns_mov_b32 s{sSelHi}, 0x07060302\ns_mov_b32 s{sHiMask}, 0xffff0000\ns_mov_b32 s{sCNT}, 200000\ns_mov_b32 s{sLog2e}, {LOG2E}')
        A(f's_getreg_b32 s{sXCC}, hwreg(HW_REG_XCC_ID, 0, 4)')
        if s.o['xdiag']:
            A(f's_cmp_eq_u32 s{sXCC}, s{sG}\ns_cbranch_scc1 L_xd2\ns_waitcnt lgkmcnt(0)\nL_xd1:\ns_memrealtime s[96:97]\ns_waitcnt lgkmcnt(0)\ns_sub_u32 s96, s96, s94\ns_cmp_lt_u32 s96, {s.o["xdiag"]}\ns_cbranch_scc1 L_xd1\nL_xd2:')
        A(f's_cmp_ge_u32 s{sW}, 4\ns_cbranch_scc1 L_tile')

    def endpgm(s):
        A=s.A
        if s.o['pad']:
            l=A.label('pad')
            A(f'{l}:\ns_memrealtime s[96:97]\ns_waitcnt lgkmcnt(0)\ns_sub_u32 s96, s96, s94\ns_cmp_lt_u32 s96, {s.o["pad"]}\ns_cbranch_scc1 {l}')
        A('s_endpgm')

    def post_kernarg(s):
        A=s.A
        A('s_waitcnt lgkmcnt(0)\ns_barrier')
        A(f's_load_dword s{sE}, s[{pWS}:{pWS+1}], 0')
        s.srd(44,pWS,WS_SIZE)

    def kv(s):
        A=s.A; o=s.o
        vK=1; vV=2; vQa=3; vKO=4; vST=31; Q=32; D=48; KR=64; VR=128; VT=192; ACC=64
        if s.prof: A(f'v_mov_b32 v{vST}, 0')
        s.stamp(0,vST)
        A(f's_lshr_b32 s64, s{sI}, 4\ns_and_b32 s65, s{sI}, 15')
        A(f's_lshl_b32 s66, s64, 3\ns_add_u32 s66, s66, s{sG}\ns_lshl_b32 s66, s66, 23\ns_add_u32 s66, s66, {7<<20}\ns_lshl_b32 s67, s65, 16\ns_add_u32 s66, s66, s67')
        A(f's_lshr_b32 s67, s{sI}, 2\ns_add_u32 s67, s67, s{sI}\ns_add_u32 s67, s67, s{sG}')
        for t in range(4):
            A(f's_add_u32 s68, s67, {t}\ns_and_b32 s68, s68, 3\ns_lshl_b32 s68, s68, 2\ns_add_u32 s68, s68, s{sW}\ns_lshl_b32 s68, s68, 12\ns_add_u32 s{70+t}, s66, s68')
        A(f'v_and_b32 v5, 3, v0\nv_lshlrev_b32 v5, 10, v5\nv_bfe_u32 v6, v0, 2, 2\nv_lshlrev_b32 v6, 8, v6\nv_lshrrev_b32 v7, 4, v0\nv_lshlrev_b32 v7, 4, v7\nv_add3_u32 v{vK}, v5, v6, v7')
        A(f'v_lshlrev_b32 v{vV}, 4, v0')
        s.post_kernarg()
        s.srd(48,pK,0x8000000); s.srd(52,pV,0x8000000)
        def xt_publish():
            s.get_tag()
            l=A.label('nxt')
            A(f's_cmp_lg_u32 s{sW}, 3\ns_cbranch_scc1 {l}')
            A(f's_lshl_b32 s8, s{sG}, 9\ns_lshl_b32 s9, s{sI}, 4\ns_add_u32 s8, s8, s9\ns_add_u32 s8, s8, {hex(WS_XT)}')
            A(f'v_mov_b32 v8, s{sXCC}\nv_mov_b32 v9, 0\nv_mov_b32 v10, 0\nv_mov_b32 v11, s{sT}\nv_mov_b32 v12, 0')
            A(f's_mov_b64 exec, 1\nbuffer_store_dwordx4 v[8:11], v12, {WS}, s8 offen sc1\ns_mov_b64 exec, -1')
            A(f'{l}:')
        def issue(thr, gates, thr0=0, n0=0):
            seq=[('K',t,kk) for t in range(4) for kk in range(4)]+[('V',t,r) for t in range(4) for r in range(4)]
            done_xt=False; base=0
            for n,(kind,t,x) in enumerate(seq):
                th=thr0 if n<n0 else thr
                for gk in gates.get(n,[]):
                    if n>0 and not done_xt: xt_publish(); done_xt=True
                    if gk=='G':
                        if not done_xt: xt_publish(); done_xt=True
                        s.waitflags4(F_G,8)
                    elif gk=='Q': s.waitflag1(F_Q,8)
                    elif gk=='P': s.waitflag1(F_P,8)
                    elif gk=='M': s.waitflags4(F_M2,8)
                if kind=='K':
                    A(f'buffer_load_dwordx4 v[{KR+16*t+4*x}:{KR+16*t+4*x+3}], v{vK}, {SA}, s{70+t} offen offset:{64*x} nt')
                else:
                    A(f'buffer_load_dwordx4 v[{VR+16*t+4*x}:{VR+16*t+4*x+3}], v{vV}, {SB}, s{70+t} offen offset:{1024*x} nt')
                f1=min(thr0 if n0 else thr, 4) if (thr0 if n0 else thr) else 4
                if not done_xt and n+1==f1: xt_publish(); done_xt=True
                lastgate=max([g for g in gates if gates[g]] or [0])
                if th and n+1>th and n<31 and n>=lastgate: A(f's_waitcnt vmcnt({th})')
                if n==15: s.stamp(1,vST)
                if n==o['nK'] and 'K' in (o['gate_wo'],o['gate_mr'],o['gate_ffn']): s.setflag(F_K, 5, 6, swave=sW)
                if n==o['nK2'] and 'K2' in (o['gate_wo'],o['gate_mr'],o['gate_ffn']): s.setflag(F_K2, 5, 6, swave=sW)
        A(f's_cmp_lt_u32 s{sI}, {I_MF}\ns_cbranch_scc1 L_kv_mf')
        A(f's_cmp_lt_u32 s{sI}, {I_BB}\ns_cbranch_scc1 L_kv_norm')
        A(f's_cmp_lt_u32 s{sI}, {I_WQ}\ns_cbranch_scc1 L_kv_wq')
        A('L_kv_norm:')
        issue(o['thr'],{},o['thr0'],o['n0'])
        A('s_branch L_kv_join')
        A('L_kv_mf:')
        gm={0:['G']}
        if o['g2_mf']!='none': gm.setdefault(o['pre_mf'],[]).append(o['g2_mf'])
        issue(o['thr_mf'],gm)
        A('s_branch L_kv_join')
        A('L_kv_wq:')
        gw={0:['G']} if o['gate_wq']!='none' else {}
        if o['g2_wq']!='none': gw.setdefault(o['pre_wq'],[]).append(o['g2_wq'])
        issue(o['thr_wq'],gw)
        A('L_kv_join:')
        s.stamp(2,vST)
        A(f'v_lshrrev_b32 v7, 4, v0\nv_lshlrev_b32 v7, 4, v7')
        A(f'v_and_b32 v5, 3, v0\nv_lshlrev_b32 v5, 8, v5\nv_add_u32 v{vQa}, v5, v7')
        A(f'v_and_b32 v5, 15, v0\nv_mul_u32_u24 v5, 576, v5\ns_mul_i32 s8, s{sW}, 2304\ns_add_u32 s8, s8, {L_KO}\nv_add3_u32 v{vKO}, v5, v7, s8')
        A('s_waitcnt vmcnt(8)')
        s.transpose(VR, VT)
        s.waitflag1(F_Q, 8)
        s.fast_from_flag(8)
        s.stamp(3,vST)
        for kk in range(4):
            A(f'ds_read_b128 v[{Q+4*kk}:{Q+4*kk+3}], v{vQa} offset:{L_Q+64*kk}')
        for kk in range(4):
            A(f's_waitcnt lgkmcnt({3-kk})')
            for t in range(4):
                c='0' if kk==0 else f'v[{D+4*t}:{D+4*t+3}]'
                A(f'v_mfma_f32_16x16x32_bf16 v[{D+4*t}:{D+4*t+3}], v[{KR+16*t+4*kk}:{KR+16*t+4*kk+3}], v[{Q+4*kk}:{Q+4*kk+3}], {c}')
        A('s_mov_b32 s10, 0x00f000f0\ns_mov_b32 s11, 0x00f000f0\ns_mov_b32 s12, 0x0f000f00\ns_mov_b32 s13, 0x0f000f00\ns_mov_b32 s14, 0xf000f000\ns_mov_b32 s15, 0xf000f000')
        S=8
        for r in range(4):
            A(f'v_cndmask_b32 v{S+r}, v{D+r}, v{D+4+r}, s[10:11]')
        for r in range(4):
            A(f'v_cndmask_b32 v{S+r}, v{S+r}, v{D+8+r}, s[12:13]')
        for r in range(4):
            A(f'v_cndmask_b32 v{S+r}, v{S+r}, v{D+12+r}, s[14:15]')
        s.round4(S,12)
        A('s_mov_b32 s8, 0x3db504f3')
        for r in range(4): A(f'v_mul_f32 v{S+r}, s8, v{S+r}')
        s.round4(S,12)
        A(f'v_max3_f32 v12, v{S}, v{S+1}, v{S+2}\nv_max_f32 v12, v12, v{S+3}')
        A('v_max_f32_dpp v12, v12, v12 row_ror:4 row_mask:0xf bank_mask:0xf\nv_max_f32_dpp v12, v12, v12 row_ror:8 row_mask:0xf bank_mask:0xf')
        s.swap16([12],[13],'v_max_f32'); s.swap32([12],[13],'v_max_f32')
        A(f'v_and_b32 v14, 3, v0\nv_lshlrev_b32 v14, 4, v14\ns_lshl_b32 s8, s{sW}, 2\nv_add_u32 v15, s8, v14')
        A('s_mov_b64 exec, 0xf')
        A(f'ds_write_b32 v15, v12 offset:{L_KM}')
        A('s_mov_b64 exec, -1')
        s.setflag(F_M, 16, 17, swave=sW)
        s.waitflags4(F_M, 16, extra=[f'ds_read_b128 v[24:27], v14 offset:{L_KM}'])
        A('v_max3_f32 v12, v24, v25, v26\nv_max_f32 v12, v12, v27')
        s.stamp(4,vST)
        for r in range(4): A(f'v_sub_f32 v{S+r}, v{S+r}, v12')
        for r in range(4): A(f'v_mul_f32 v{S+r}, s{sLog2e}, v{S+r}')
        for r in range(4): A(f'v_exp_f32 v{S+r}, v{S+r}')
        P=16
        A(f'v_cvt_pk_bf16_f32 v{P}, v{S}, v{S+1}\nv_cvt_pk_bf16_f32 v{P+1}, v{S+2}, v{S+3}')
        A(f'v_add_f32 v13, v{S}, v{S+1}\nv_add_f32 v28, v{S+2}, v{S+3}\nv_add_f32 v13, v13, v28')
        for (d,src,sh) in [(P+2,P,4),(P+3,P+1,4),(P+4,P,8),(P+5,P+1,8),(P+6,P,12),(P+7,P+1,12)]:
            A(f'v_mov_b32_dpp v{d}, v{src} row_shl:{sh} row_mask:0xf bank_mask:0xf bound_ctrl:0')
        for j in range(8):
            A(f'v_mfma_f32_16x16x32_bf16 v[{ACC+4*j}:{ACC+4*j+3}], v[{VT+4*j}:{VT+4*j+3}], v[{P}:{P+3}], 0')
        A('v_add_f32_dpp v13, v13, v13 row_ror:4 row_mask:0xf bank_mask:0xf\nv_add_f32_dpp v13, v13, v13 row_ror:8 row_mask:0xf bank_mask:0xf')
        s.swap16([13],[28]); s.swap32([13],[28])
        A('s_mov_b64 exec, 0xf')
        A(f'ds_write_b32 v15, v13 offset:{L_KL}')
        A('s_mov_b64 exec, -1')
        A('s_waitcnt vmcnt(0)')
        s.stamp(5,vST)
        s.transpose(VR+32, VT+32)
        for j in range(8):
            A(f'v_mfma_f32_16x16x32_bf16 v[{ACC+4*j}:{ACC+4*j+3}], v[{VT+32+4*j}:{VT+32+4*j+3}], v[{P+4}:{P+7}], v[{ACC+4*j}:{ACC+4*j+3}]')
        A('s_mov_b32 s10, 0x000f000f\ns_mov_b32 s11, 0x000f000f\ns_mov_b64 exec, s[10:11]')
        for j in range(8):
            A(f'ds_write_b128 v{vKO}, v[{ACC+4*j}:{ACC+4*j+3}] offset:{64*j}')
        A('s_mov_b64 exec, -1')
        s.setflag(F_O, 16, 17, swave=sW)
        A(f's_mul_i32 s8, s{sW}, 576\ns_add_u32 s8, s8, {L_KO}\nv_and_b32 v24, 31, v0\nv_lshlrev_b32 v24, 4, v24\nv_add_u32 v24, s8, v24')
        A(f's_lshl_b32 s9, s{sW}, 4\ns_add_u32 s9, s9, {L_KL}\nv_mov_b32 v25, s9')
        A(f's_lshl_b32 s8, s{sG}, 2\ns_add_u32 s8, s8, s{sW}\ns_lshl_b32 s8, s8, 1\ns_add_u32 s8, s8, s64\ns_lshl_b32 s8, s8, 4\ns_add_u32 s8, s8, s65\ns_mul_i32 s12, s8, 576\ns_add_u32 s12, s12, {hex(WS_AS)}')
        A(f'v_lshlrev_b32 v57, 4, v0')
        G=52
        A(f'v_mov_b32 v{G+2}, 0\nv_mov_b32 v{G+3}, s{sT}')
        O=32
        ex=[f'ds_read_b128 v[{O+4*w}:{O+4*w+3}], v24 offset:{2304*w}' for w in range(4)]+[f'ds_read_b128 v[48:51], v25']
        s.waitflags4(F_O, 16, extra=ex)
        for r in range(4):
            A(f'v_add_f32 v{O+r}, v{O+r}, v{O+4+r}\nv_add_f32 v{O+8+r}, v{O+8+r}, v{O+12+r}')
        for r in range(4):
            A(f'v_add_f32 v{O+r}, v{O+r}, v{O+8+r}')
        A('v_add_f32 v48, v48, v49\nv_add_f32 v50, v50, v51\nv_add_f32 v48, v48, v50')
        A(f'v_readlane_b32 s8, v12, s{sW}')
        A(f'v_cvt_pk_bf16_f32 v{G}, v{O}, v{O+1}\nv_cvt_pk_bf16_f32 v{G+1}, v{O+2}, v{O+3}')
        A(f'v_mov_b32 v56, s8')
        A('s_mov_b32 s10, 0\ns_mov_b32 s11, 1')
        A(f'v_cndmask_b32 v{G}, v{G}, v56, s[10:11]\nv_cndmask_b32 v{G+1}, v{G+1}, v48, s[10:11]')
        A('s_mov_b32 s10, -1\ns_mov_b32 s11, 1\ns_mov_b64 exec, s[10:11]')
        s.gstore(f'buffer_store_dwordx4 v[{G}:{G+3}], v57, {WS}, s12 offen')
        s.stamp(6,vST)
        s.stamp_flush(vST, 5)
        s.endpgm()

    def tile_consts(s):
        A=s.A
        A(f's_sub_u32 s{sTW}, s{sW}, 4')
        A(f's_mul_i32 s8, s{sTW}, 640\ns_add_u32 s8, s8, {L_ACT}')
        A(f'v_lshrrev_b32 v8, 5, v0\nv_and_b32 v9, 31, v0')
        A(f'v_mul_u32_u24 v10, {BSTR}, v8\nv_lshlrev_b32 v11, 3, v9\nv_add3_u32 v3, v10, v11, s8')
        A(f'v_and_b32 v10, 1, v0\nv_mul_u32_u24 v10, {BSTR}, v10\nv_bfe_u32 v11, v0, 1, 1\nv_lshlrev_b32 v11, 6, v11\nv_lshrrev_b32 v12, 4, v0\nv_lshlrev_b32 v12, 4, v12\nv_add3_u32 v7, v10, v11, v12')
        A(f'v_add_u32 v4, s8, v7')
        A(f'v_lshrrev_b32 v10, 4, v9\nv_lshlrev_b32 v10, 9, v10\nv_lshlrev_b32 v11, 8, v8\nv_and_b32 v12, 15, v0\nv_lshlrev_b32 v12, 4, v12\nv_add3_u32 v5, v10, v11, v12')
        A(f's_lshl_b32 s8, s{sTW}, 9\ns_add_u32 s8, s8, {L_PART}\nv_and_b32 v10, 7, v0\nv_lshlrev_b32 v10, 5, v10\nv_add_u32 v6, s8, v10')
    def wlane(s, dst, RS, cmask=7):
        A=s.A
        A(f'v_bfe_u32 v10, v0, 3, 1\nv_lshlrev_b32 v10, 5, v10\nv_lshrrev_b32 v11, 4, v0\nv_lshlrev_b32 v11, 3, v11\nv_add_u32 v10, v10, v11\nv_mul_u32_u24 v10, {RS}, v10\nv_and_b32 v11, {cmask}, v0\nv_lshlrev_b32 v11, 4, v11\nv_add_u32 v{dst}, v10, v11')
    def wloads(s, srd, vl, sbase, rowoffs, RS, raw, stmp=66, thr=0):
        A=s.A
        for n,ro in enumerate(rowoffs):
            if ro==0: so=f's{sbase}'
            else:
                A(f's_add_u32 s{stmp}, s{sbase}, {ro*RS}'); so=f's{stmp}'
            A(f'buffer_load_dwordx4 v[{raw+4*n}:{raw+4*n+3}], v{vl}, {srd}, {so} offen nt')
            if thr and n+1>thr and n+1<len(rowoffs): A(f's_waitcnt vmcnt({thr})')
    def xt_pre(s, d, va):
        return [f'buffer_load_dwordx4 v[{d}:{d+3}], v{va}, {WS}, s91 offen sc1']
    def xt_setup(s, va):
        s.A(f'v_and_b32 v{va}, 31, v0\nv_lshlrev_b32 v{va}, 4, v{va}\ns_lshl_b32 s91, s{sG}, 9\ns_add_u32 s91, s91, {hex(WS_XT)}')
    def xt_eval(s, d, t):
        A=s.A
        A(f'v_xor_b32 v{t}, s{sT}, v{d+3}\nv_xor_b32 v{t+1}, s{sXCC}, v{d}\nv_or_b32 v{t}, v{t}, v{t+1}\nv_cmp_ne_u32 vcc, 0, v{t}')
        A(f's_cmp_eq_u64 vcc, 0\ns_cselect_b32 s{sFast}, 1, 0')
    def ppoll(s, nset, setbase, setsize, loads, tmp, done):
        A=s.A; lp=A.label('pp'); fin=A.label('ppf')
        nl=len(loads)
        def issue(k):
            for (ro,va,so,imm) in loads:
                d=setbase+k*setsize+ro
                A(f'buffer_load_dwordx4 v[{d}:{d+3}], v{va}, {WS}, {so} offen offset:{imm} sc1')
        for k in range(nset): issue(k)
        labs=[A.label('ppd') for k in range(nset)]
        A(f'{lp}:')
        for k in range(nset):
            A(f's_waitcnt vmcnt({nl*(nset-1)})')
            first=True
            for (ro,va,so,imm) in loads:
                d=setbase+k*setsize+ro
                if first: A(f'v_xor_b32 v{tmp}, s{sT}, v{d+3}'); first=False
                else: A(f'v_xor_b32 v{tmp+1}, s{sT}, v{d+3}\nv_or_b32 v{tmp}, v{tmp}, v{tmp+1}')
            A(f'v_cmp_ne_u32 vcc, 0, v{tmp}')
            A(f's_cbranch_vccz {labs[k]}')
            issue(k)
        A(f's_sub_u32 s{sCNT}, s{sCNT}, 1\ns_cbranch_scc0 {lp}\ns_mov_b32 s{sCNT}, 0')
        for k in range(nset):
            A(f'{labs[k]}:')
            done(k)
            if k<nset-1: A(f's_branch {fin}')
        A(f'{fin}:')
    def qpoll(s, vST):
        A=s.A; dn=A.label('qd')
        A(f's_cmp_lg_u32 s{sTW}, 0\ns_cbranch_scc1 {dn}')
        A(f'v_lshrrev_b32 v8, 4, v0\nv_lshlrev_b32 v8, 9, v8\nv_and_b32 v9, 15, v0\nv_lshlrev_b32 v9, 4, v9\nv_add_u32 v8, v8, v9')
        A(f's_lshr_b32 s8, s{sI}, 4\ns_lshl_b32 s8, s8, 8\ns_lshl_b32 s66, s{sG}, 12\ns_add_u32 s66, s66, s8\ns_add_u32 s66, s66, {hex(WS_Q)}')
        A(f'v_lshlrev_b32 v9, 3, v0\nv_mov_b32 v10, {L_F+4*F_Q}')
        SB_=32
        def done(k):
            d=SB_+8*k
            A(f'ds_write_b64 v9, v[{d}:{d+1}] offset:{L_Q}\nds_write_b64 v9, v[{d+4}:{d+5}] offset:{L_Q+512}')
            A(f'v_or_b32 v11, v{d+2}, v{d+6}')
        s.ppoll(s.o['npipe_q'],SB_,8,[(0,8,'s66',0),(4,8,'s66',2048)],12,done)
        A('v_cmp_ne_u32 vcc, 0, v11\ns_cmp_lg_u64 vcc, 0\ns_cselect_b32 s9, 2, 1')
        A('v_mov_b32 v11, s9\ns_mov_b64 exec, 1\nds_write_b32 v10, v11\ns_mov_b64 exec, -1')
        s.stamp(4,vST)
        A(f'{dn}:')
    def final_sum(s, O):
        A=s.A
        for r in range(4):
            A(f'v_add_f32 v{O+r}, v{O+r}, v{O+4+r}\nv_add_f32 v{O+8+r}, v{O+8+r}, v{O+12+r}')
        for r in range(4):
            A(f'v_add_f32 v{O+r}, v{O+r}, v{O+8+r}')
    def final_tile(s, O, G):
        s.final_sum(O)
        s.A(f'v_cvt_pk_bf16_f32 v{G}, v{O}, v{O+1}\nv_cvt_pk_bf16_f32 v{G+1}, v{O+2}, v{O+3}')
    def part_read_list(s, O, va):
        return [f'ds_read_b128 v[{O+4*w}:{O+4*w+3}], v{va} offset:{512*w}' for w in range(4)]
    def ln_apply(s, X, sm, srs, t):
        A=s.A
        for r in range(4): A(f'v_sub_f32 v{X+r}, v{X+r}, v{sm}')
        s.round4(X,t)
        for r in range(4): A(f'v_mul_f32 v{X+r}, v{X+r}, v{srs}')
        s.round4(X,t)
    def mod_apply(s, X, C1, SH, t):
        A=s.A
        for r in range(4): A(f'v_mul_f32 v{X+r}, v{X+r}, v{C1+r}')
        s.round4(X,t)
        for r in range(4): A(f'v_add_f32 v{X+r}, v{X+r}, v{SH+r}')
        A(f'v_cvt_pk_bf16_f32 v{t}, v{X}, v{X+1}\nv_cvt_pk_bf16_f32 v{t+1}, v{X+2}, v{X+3}')
    def ln_final(s, mean, var, t):
        A=s.A
        s.round1(mean,t); s.round1(var,t)
        A(f'v_add_f32 v{var}, 0x3727c5ac, v{var}')
        s.round1(var,t)
        A(f'v_sqrt_f32 v{var}, v{var}')
        s.round1(var,t)
        A(f'v_rcp_f32 v{var}, v{var}')
    def silu4(s, X, t):
        A=s.A
        for r in range(4): A(f'v_mul_f32 v{t+r}, s{sLog2e}, v{X+r}')
        for r in range(4): A(f'v_exp_f32 v{t+r}, -v{t+r}')
        for r in range(4): A(f'v_add_f32 v{t+r}, 1.0, v{t+r}')
        for r in range(4): A(f'v_rcp_f32 v{t+r}, v{t+r}')
        for r in range(4): A(f'v_mul_f32 v{X+r}, v{X+r}, v{t+r}')
    def gate(s, g):
        if g=='K': s.waitflags4(F_K,8)
        elif g=='K2': s.waitflags4(F_K2,8)
        elif g=='O': s.waitflags4(F_O,8)

    def tile(s):
        A=s.A; o=s.o
        RAW=64; T=128; ACC=32; R=16
        vST=255
        A('L_tile:')
        if s.prof: A(f'v_mov_b32 v{vST}, 0')
        s.stamp(0,vST)
        s.tile_consts()
        s.post_kernarg()
        A(f's_cmp_lt_u32 s{sI}, {I_MF}\ns_cbranch_scc1 L_mf')
        A(f's_cmp_lt_u32 s{sI}, {I_BB}\ns_cbranch_scc1 L_bb')
        A(f's_cmp_lt_u32 s{sI}, {I_WQ}\ns_cbranch_scc1 L_wq')
        A(f's_cmp_lt_u32 s{sI}, {I_WO}\ns_cbranch_scc1 L_wo')
        A(f's_cmp_lt_u32 s{sI}, {I_MR}\ns_cbranch_scc1 L_mr')
        A(f's_cmp_lt_u32 s{sI}, {I_FFN}\ns_cbranch_scc1 L_ffn')
        s.get_tag()
        A('s_branch L_qpoll')
        A('L_bb:')
        s.get_tag()
        A(f's_cmp_eq_u32 s{sTW}, 0\ns_cbranch_scc1 L_qpoll\ns_branch L_tail')

        def modtile(mf):
            A('L_mf:' if mf else 'L_mr:')
            s.srd(56,pC,2048); s.srd(48,pWM,512*6144)
            if mf:
                A(f's_lshl_b32 s65, s{sG}, 1\ns_add_u32 s65, s65, s{sI}')
            else:
                A(f's_lshl_b32 s65, s{sG}, 2\ns_add_u32 s65, s65, s{sI}\ns_sub_u32 s65, s65, {I_WO-16}')
            A(f'v_lshrrev_b32 v8, 5, v0\nv_and_b32 v9, 31, v0\nv_lshlrev_b32 v10, 10, v8\nv_lshlrev_b32 v11, 3, v9\ns_lshl_b32 s8, s{sTW}, 8\nv_add3_u32 v12, v10, v11, s8')
            A(f'buffer_load_dwordx2 v[24:25], v12, {SC}, 0 offen')
            s.wlane(2,6144)
            A(f's_mul_i32 s67, s{sTW}, {128*6144}\ns_lshl_b32 s8, s65, 7\ns_add_u32 s67, s67, s8')
            rows=[64*blk+ii for blk in range(2) for ii in range(8)]
            if mf:
                s.wloads(SA,2,67,rows,6144,RAW,stmp=68)
                s.setflag(F_G,8,9,swave=sTW)
                s.get_tag()
            else:
                if o['gate_mr']!='start':
                    s.gate(o['gate_mr'])
                s.wloads(SA,2,67,rows,6144,RAW,stmp=68,thr=o['thr_w'])
                s.get_tag()
                s.qpoll(vST)
            A(f'v_and_b32 v200, 31, v0\nv_lshlrev_b32 v200, 4, v200\nv_add_u32 v201, {L_PART}, v200')
            A(f's_lshl_b32 s66, s65, 9\ns_add_u32 s66, s66, {hex(WS_MOD)}')
            A('s_waitcnt vmcnt(16)')
            s.unpack2(24,8,9); s.unpack2(25,10,11)
            s.silu4(8,16)
            A('v_cvt_pk_bf16_f32 v12, v8, v9\nv_cvt_pk_bf16_f32 v13, v10, v11')
            A('ds_write_b64 v3, v[12:13]')
            A('s_waitcnt vmcnt(8)')
            s.transpose(RAW,T)
            A('s_waitcnt vmcnt(0)')
            s.stamp(1,vST)
            s.transpose(RAW+32,T+32)
            A('s_waitcnt lgkmcnt(0)')
            s.mm(4,2,T,8,ACC,R)
            s.part_write(R,6)
            s.setflag(F_T1,8,9,swave=sTW)
            A(f's_cmp_lg_u32 s{sTW}, 0\ns_cbranch_scc1 L_tail')
            A(f'v_mov_b32 v18, 0\nv_mov_b32 v19, s{sT}')
            s.waitflags4(F_T1,8,extra=s.part_read_list(32,201))
            s.final_tile(32,16)
            A('s_mov_b32 exec_hi, 0')
            A(f'buffer_store_dwordx4 v[16:19], v200, {WS}, s66 offen sc1')
            A('s_mov_b32 exec_hi, -1')
            if mf and o['g2_mf']=='P': s.setflag(F_P,8,9)
            s.stamp(3,vST)
            A('s_branch L_qpoll' if mf else 's_branch L_tdone')
        modtile(True); modtile(False)

        A('L_wq:')
        s.srd(56,pX,2048); s.srd(48,pWQ,512*8192)
        A(f'v_lshrrev_b32 v8, 5, v0\nv_and_b32 v9, 31, v0\nv_lshlrev_b32 v10, 10, v8\nv_lshlrev_b32 v11, 3, v9\ns_lshl_b32 s8, s{sTW}, 8\nv_add3_u32 v12, v10, v11, s8\nv_lshlrev_b32 v11, 5, v9\nv_add_u32 v13, v10, v11')
        A(f'buffer_load_dwordx2 v[14:15], v12, {SC}, 0 offen\nbuffer_load_dwordx4 v[16:19], v13, {SC}, 0 offen\nbuffer_load_dwordx4 v[20:23], v13, {SC}, 0 offen offset:16')
        s.wlane(2,8192)
        A(f's_sub_u32 s69, s{sI}, {I_BB}')
        A(f's_mul_i32 s65, s{sTW}, {128*8192}\ns_lshl_b32 s8, s{sG}, 10\ns_lshl_b32 s9, s69, 7\ns_add_u32 s65, s65, s8\ns_add_u32 s65, s65, s9')
        s.wloads(SA,2,65,[64*blk+ii for blk in range(2) for ii in range(8)],8192,RAW)
        if o['gate_wq']=='issued': s.setflag(F_G,8,9,swave=sTW)
        A('s_waitcnt vmcnt(16)')
        for k in range(8): s.unpack2(16+k, 32+2*k, 33+2*k)
        A('v_add_f32 v48, v32, v33')
        for k in range(2,16): A(f'v_add_f32 v48, v48, v{32+k}')
        s.rowsum16([48]); s.swap16([48],[49])
        A('v_mul_f32 v48, 0x3b000000, v48')
        for k in range(16): A(f'v_sub_f32 v{32+k}, v{32+k}, v48')
        A('v_mul_f32 v50, v32, v32')
        for k in range(1,16): A(f'v_fmac_f32 v50, v{32+k}, v{32+k}')
        s.rowsum16([50]); s.swap16([50],[49])
        A('v_mul_f32 v50, 0x3b000000, v50')
        s.ln_final(48,50,49)
        s.unpack2(14,8,9); s.unpack2(15,10,11)
        s.ln_apply(8,48,50,12)
        A(f's_lshl_b32 s66, s{sTW}, 10\ns_add_u32 s66, s66, {hex(WS_MOD)}\ns_add_u32 s67, s66, {8*512}')
        s.xt_setup(203)
        A(f'v_and_b32 v200, 31, v0\nv_lshlrev_b32 v200, 4, v200\nv_add_u32 v201, {L_PART}, v200')
        A(f's_lshl_b32 s68, s{sG}, 12\ns_lshl_b32 s8, s69, 9\ns_add_u32 s68, s68, s8\ns_add_u32 s68, s68, {hex(WS_Q)}')
        s.get_tag()
        A('s_waitcnt vmcnt(8)')
        s.transpose(RAW,T)
        A('s_waitcnt vmcnt(0)')
        s.stamp(1,vST)
        if o['gate_wq']=='arrived': s.setflag(F_G,36,37,swave=sTW)
        s.transpose(RAW+32,T+32)
        s.poll([(20,5,'s66',0),(24,5,'s67',0)],12,pre=s.xt_pre(32,203))
        if o['gate_wq']=='mod': s.setflag(F_G,36,37,swave=sTW)
        if o['g2_wq']=='M': s.setflag(F_M2,36,37,swave=sTW)
        s.stamp(2,vST)
        s.unpack2(20,16,17); s.unpack2(21,18,19)
        s.unpack2(24,28,29); s.unpack2(25,30,31)
        for r in range(4): A(f'v_add_f32 v{28+r}, 1.0, v{28+r}')
        s.round4(28,12)
        s.mod_apply(8,28,16,12)
        A('ds_write_b64 v3, v[12:13]')
        s.xt_eval(32,14)
        A('s_waitcnt lgkmcnt(0)')
        s.mm(4,2,T,8,ACC,R)
        s.part_write(R,6)
        s.setflag(F_T1,8,9,swave=sTW)
        A(f's_cmp_lg_u32 s{sTW}, 0\ns_cbranch_scc1 L_tail')
        A(f'v_mov_b32 v18, s{sFast}\nv_mov_b32 v19, s{sT}')
        s.waitflags4(F_T1,8,extra=s.part_read_list(32,201))
        s.final_tile(32,16)
        A('s_mov_b32 exec_hi, 0')
        s.gstore(f'buffer_store_dwordx4 v[16:19], v200, {WS}, s68 offen')
        A('s_mov_b32 exec_hi, -1')
        if o['g2_wq']=='P': s.setflag(F_P,8,9)
        s.stamp(3,vST)
        A('s_branch L_qpoll')

        A('L_wo:')
        s.srd(48,pWO,4096*1024)
        A('v_bfe_u32 v10, v0, 4, 1\nv_lshlrev_b32 v10, 6, v10\nv_bfe_u32 v11, v0, 3, 1\nv_lshlrev_b32 v11, 1, v11\nv_lshrrev_b32 v12, 5, v0\nv_add3_u32 v10, v10, v11, v12\nv_lshlrev_b32 v10, 10, v10\nv_and_b32 v11, 7, v0\nv_lshlrev_b32 v11, 4, v11\nv_add_u32 v2, v10, v11')
        A(f's_sub_u32 s65, s{sI}, {I_WQ}\ns_lshr_b32 s65, s65, 1\ns_and_b32 s69, s{sI}, 1\ns_lshl_b32 s68, s{sG}, 2\ns_add_u32 s68, s68, s65')
        A(f's_lshl_b32 s67, s68, 17\ns_lshl_b32 s8, s69, 9\ns_add_u32 s67, s67, s8\ns_lshl_b32 s8, s{sTW}, 7\ns_add_u32 s67, s67, s8')
        if o['gate_wo']!='start':
            s.gate(o['gate_wo'])
        s.stamp(2,vST)
        s.wloads(SA,2,67,[32*(ii>>2)+8*(ii&3)+4*blk for blk in range(2) for ii in range(8)],1024,RAW,stmp=70,thr=o['thr_w'])
        s.get_tag()
        s.qpoll(vST)
        A('s_waitcnt vmcnt(8)')
        s.transpose(RAW,T)
        A('s_waitcnt vmcnt(0)')
        s.stamp(1,vST)
        s.transpose(RAW+32,T+32)
        A('s_branch L_wo2')

        A('L_ffn:')
        A(f's_mul_i32 s65, s{sG}, 7\ns_add_u32 s65, s65, s{sI}\ns_sub_u32 s65, s65, {I_MR}')
        s.srd(48,pW1,512*3584); s.srd(52,pW3,512*3584); s.srd(56,pW2,1792*1024)
        s.wlane(2,3584,cmask=3)
        A(f's_mul_i32 s67, s{sTW}, {128*3584}\ns_lshl_b32 s8, s65, 6\ns_add_u32 s67, s67, s8')
        A('v_lshrrev_b32 v10, 4, v0\nv_lshlrev_b32 v10, 13, v10\nv_and_b32 v11, 15, v0\nv_lshlrev_b32 v11, 4, v11\nv_add_u32 v1, v10, v11')
        A(f's_lshl_b32 s69, s65, 15\ns_lshl_b32 s8, s{sTW}, 8\ns_add_u32 s69, s69, s8')
        A('s_mov_b32 s72, 0x0f0f0f0f\ns_mov_b32 s73, 0x0f0f0f0f\ns_mov_b32 s74, 0xf0f0f0f0\ns_mov_b32 s75, 0xf0f0f0f0')
        s.get_tag()
        s.qpoll(vST)
        s.gate(o['gate_ffn'])
        s.stamp(2,vST)
        for blk in range(2):
            A('s_mov_b64 exec, s[72:73]')
            s.wloads(SA,2,67,[64*blk+ii for ii in range(8)],3584,RAW+32*blk,stmp=68)
            A('s_mov_b64 exec, s[74:75]')
            s.wloads(SB,2,67,[64*blk+ii for ii in range(8)],3584,RAW+32*blk,stmp=68)
        A('s_mov_b64 exec, -1')
        s.wloads(SC,1,69,list(range(8)),1024,192,stmp=68)
        A('s_waitcnt vmcnt(24)')
        s.transpose(RAW,T)
        A('s_waitcnt vmcnt(8)')
        s.transpose(RAW+32,T+32)
        A('s_waitcnt vmcnt(0)')
        s.stamp(1,vST)
        s.transpose(192,RAW)
        A('s_branch L_ffn2')

        A('L_qpoll:')
        s.qpoll(vST)
        A('s_branch L_tdone')
        A('L_tail:')
        A(f's_cmp_eq_u32 s{sTW}, 1\ns_cbranch_scc1 L_b1\ns_branch L_tdone')

        A('L_wo2:')
        A(f's_and_b32 s70, s{sTW}, 1\ns_lshr_b32 s71, s{sTW}, 1')
        A(f's_lshl_b32 s72, s68, 1\ns_add_u32 s72, s72, s70\ns_mul_i32 s72, s72, {16*576}\ns_add_u32 s72, s72, {hex(WS_AS)}')
        A(f's_lshl_b32 s8, s71, 8\ns_add_u32 s73, s72, s8\ns_add_u32 s74, s73, {2*2304}')
        A('v_lshrrev_b32 v8, 4, v0\nv_and_b32 v9, 15, v0\nv_mul_u32_u24 v10, 576, v8\nv_lshlrev_b32 v11, 4, v9\nv_add_u32 v12, v10, v11')
        A('v_and_b32 v11, 3, v0\nv_mul_u32_u24 v11, 2304, v11\nv_add3_u32 v13, v10, v11, 0\nv_add_u32 v13, 512, v13')
        A(f's_mul_i32 s8, s70, {BSTR}\ns_lshl_b32 s9, s71, 7\ns_add_u32 s8, s8, s9\ns_add_u32 s8, s8, {L_OACT}\nv_lshlrev_b32 v14, 3, v9\nv_add_u32 v14, s8, v14')
        A(f'v_add_u32 v15, {L_OACT}, v7')
        A(f'v_and_b32 v2, 7, v0\nv_mul_u32_u24 v2, 48, v2\ns_lshl_b32 s8, s69, 5\ns_lshl_b32 s9, s{sTW}, 3\ns_add_u32 s8, s8, s9\ns_mul_i32 s8, s8, 48\ns_mul_i32 s75, s68, 3072\ns_add_u32 s75, s75, s8\ns_add_u32 s75, s75, {hex(WS_AO)}')
        A('v_mov_b32 v56, v12')
        s.waitflags4(F_O,8)
        s.poll([(32,56,'s73',0),(36,56,'s73',2304),(40,56,'s74',0),(44,56,'s74',2304),(48,13,'s72',0)],8)
        s.stamp(5,vST)
        A('v_mov_b32 v50, v48')
        A('v_max_f32_dpp v50, v50, v50 quad_perm:[1,0,3,2] row_mask:0xf bank_mask:0xf\nv_max_f32_dpp v50, v50, v50 quad_perm:[2,3,0,1] row_mask:0xf bank_mask:0xf')
        s.swap16([50],[51],'v_max_f32'); s.swap32([50],[51],'v_max_f32')
        A(f'v_sub_f32 v48, v48, v50\nv_mul_f32 v48, s{sLog2e}, v48\nv_exp_f32 v48, v48')
        A('v_mul_f32 v49, v48, v49')
        A('v_add_f32_dpp v49, v49, v49 quad_perm:[1,0,3,2] row_mask:0xf bank_mask:0xf\nv_add_f32_dpp v49, v49, v49 quad_perm:[2,3,0,1] row_mask:0xf bank_mask:0xf')
        s.swap16([49],[51]); s.swap32([49],[51])
        A('v_rcp_f32 v49, v49\nv_mul_f32 v48, v48, v49')
        for q in range(4):
            s.unpack2(32+4*q, 16, 17); s.unpack2(33+4*q, 18, 19)
            for e in range(4):
                op='v_mul_f32_dpp' if q==0 else 'v_fmac_f32_dpp'
                A(f'{op} v{20+e}, v48, v{16+e} quad_perm:[{q},{q},{q},{q}] row_mask:0xf bank_mask:0xf')
        s.swap16([20,21,22,23],[16,17,18,19]); s.swap32([20,21,22,23],[16,17,18,19])
        A('v_cvt_pk_bf16_f32 v16, v20, v21\nv_cvt_pk_bf16_f32 v17, v22, v23')
        A('s_mov_b64 exec, 0xffff\nds_write_b64 v14, v[16:17]\ns_mov_b64 exec, -1')
        s.setflag(F_T2,8,9,swave=sTW)
        s.waitflags4(F_T2,8)
        s.mm(15,2,T,8,ACC,R)
        s.publishR(lambda b,j: R+8*b+j,32,2,'s75','0xff')
        s.stamp(6,vST)
        A('s_branch L_tdone')

        A('L_b1:')
        A(f's_sub_u32 s8, s{sI}, 8\ns_cmp_ge_u32 s{sI}, {I_WO}\ns_cselect_b32 s65, s8, s{sI}')
        s.srd(56,pX,2048); s.srd(60,pOUT,2048)
        A('v_and_b32 v8, 3, v0\nv_bfe_u32 v9, v0, 2, 2\nv_lshrrev_b32 v10, 4, v0\nv_lshrrev_b32 v11, 5, v0\nv_bfe_u32 v12, v0, 4, 1')
        A('v_lshlrev_b32 v13, 10, v11\nv_lshlrev_b32 v14, 4, v8\nv_lshlrev_b32 v15, 3, v12\nv_add3_u32 v13, v13, v14, v15\ns_lshl_b32 s8, s65, 6\nv_add_u32 v2, s8, v13')
        A(f'buffer_load_dwordx2 v[16:17], v2, {SC}, 0 offen')
        A('v_lshlrev_b32 v13, 8, v11\nv_lshlrev_b32 v14, 5, v8\nv_lshlrev_b32 v15, 4, v12\nv_add3_u32 v13, v13, v14, v15\ns_and_b32 s8, s65, 1\ns_lshl_b32 s8, s8, 7\nv_add_u32 v3, s8, v13')
        A(f's_lshr_b32 s8, s65, 1\ns_lshl_b32 s8, s8, 9\ns_add_u32 s66, s8, {hex(WS_MOD+16*512)}\ns_add_u32 s67, s66, {24*512}')
        A('v_lshlrev_b32 v13, 11, v11\nv_lshlrev_b32 v14, 5, v8\nv_lshlrev_b32 v15, 4, v12\nv_add3_u32 v13, v13, v14, v15\ns_lshl_b32 s8, s65, 7\nv_add_u32 v4, s8, v13')
        A(f's_lshl_b32 s68, s{sG}, 12\ns_add_u32 s68, s68, {hex(WS_X1)}')
        A('v_lshlrev_b32 v13, 8, v11\ns_lshl_b32 s8, s65, 4\nv_add_u32 v5, s8, v13')
        A(f's_lshl_b32 s69, s{sG}, 9\ns_add_u32 s69, s69, {hex(WS_XS)}')
        A('v_lshlrev_b32 v13, 2, v10\nv_add_u32 v13, v13, v9\nv_mul_u32_u24 v13, 3072, v13\nv_mul_u32_u24 v14, 48, v8\ns_mul_i32 s8, s65, 192\nv_add3_u32 v6, v13, v14, s8')
        A(f's_mov_b32 s70, {hex(WS_AO)}\ns_mov_b32 s71, {hex(WS_AO+16*3072)}')
        A(f's_mov_b32 s72, {hex(WS_YO)}\ns_mov_b32 s73, {hex(WS_YO+16*3072)}\ns_mov_b32 s74, {hex(WS_YO+32*3072)}\ns_mov_b32 s75, {hex(WS_YO+48*3072)}')
        SEL=64
        A('v_bfe_u32 v13, v0, 1, 3\nv_and_b32 v14, 1, v0\nv_mov_b32 v15, 0x3f80\nv_mov_b32 v7, 0x3f800000\nv_cmp_eq_u32 vcc, 1, v14\nv_cndmask_b32 v15, v15, v7, vcc')
        for kind in range(3):
            for pp in range(4):
                x=3*kind+pp
                d=SEL+4*kind+pp
                if pp==3 or x>7: A(f'v_mov_b32 v{d}, 0')
                else: A(f'v_cmp_eq_u32 vcc, {x}, v13\nv_cndmask_b32 v{d}, 0, v15, vcc')
        s.poll([(20,3,'s66',0),(24,3,'s67',0)],13)
        s.unpack2(16,28,29); s.unpack2(17,30,31)
        s.unpack2(20,32,33); s.unpack2(21,34,35)
        s.unpack2(24,36,37); s.unpack2(25,38,39)
        s.stamp(5,vST)
        GA=80
        def gather_reduce(bases, nfull):
            full=[(GA+12*st+4*k,6,bases[st],16*k) for st in range(nfull) for k in range(3)]
            mk=[(GA+12*st+4*k,6,bases[st],16*k) for st in range(nfull,len(bases)) for k in range(3)]
            for (d,_,_,_) in mk:
                A(f'v_mov_b32 v{d}, 0\nv_mov_b32 v{d+1}, 0\nv_mov_b32 v{d+2}, 0\nv_mov_b32 v{d+3}, s{sT}')
            s.poll(full,13,masked=mk)
            n=3*len(bases)
            for k in range(n): A(f'v_mov_b32 v{GA+4*k+3}, 0')
            for k in range(n):
                acc=40 if k%2==0 else 44
                c='0' if k<2 else f'v[{acc}:{acc+3}]'
                A(f'v_mfma_f32_16x16x32_bf16 v[{acc}:{acc+3}], v[{SEL+4*(k%3)}:{SEL+4*(k%3)+3}], v[{GA+4*k}:{GA+4*k+3}], {c}')
            for r in range(4): A(f'v_add_f32 v{40+r}, v{40+r}, v{44+r}')
            for sh in (4,8):
                for r in range(4):
                    A(f'v_add_f32_dpp v{40+r}, v{40+r}, v{40+r} row_ror:{sh} row_mask:0xf bank_mask:0xf')
        s.waitflags4(F_O,48)
        s.waitflag1(F_Q,48); s.fast_from_flag(48)
        A(f'v_mov_b32 v58, 0\nv_mov_b32 v59, s{sT}')
        gather_reduce(['s70','s71'],2)
        s.stamp(6,vST)
        s.round4(40,13)
        for r in range(4): A(f'v_mul_f32 v{40+r}, v{32+r}, v{40+r}')
        s.round4(40,13)
        for r in range(4): A(f'v_add_f32 v{40+r}, v{28+r}, v{40+r}')
        A('v_cvt_pk_bf16_f32 v44, v40, v41\nv_cvt_pk_bf16_f32 v45, v42, v43')
        A(f'v_mov_b32 v46, 0\nv_mov_b32 v47, s{sT}')
        A('s_mov_b32 s10, 0x000f000f\ns_mov_b32 s11, 0x000f000f\ns_mov_b64 exec, s[10:11]')
        s.gstore(f'buffer_store_dwordx4 v[44:47], v4, {WS}, s68 offen')
        A('s_mov_b64 exec, -1')
        s.unpack2(44,28,29); s.unpack2(45,30,31)
        A('v_add_f32 v56, v28, v29\nv_add_f32 v57, v30, v31\nv_add_f32 v56, v56, v57')
        A('v_mul_f32 v57, v28, v28\nv_fmac_f32 v57, v29, v29\nv_fmac_f32 v57, v30, v30\nv_fmac_f32 v57, v31, v31')
        for qp in ('[1,0,3,2]','[2,3,0,1]'):
            for r in (56,57): A(f'v_add_f32_dpp v{r}, v{r}, v{r} quad_perm:{qp} row_mask:0xf bank_mask:0xf')
        s.swap16([56,57],[52,53])
        A('s_mov_b32 s10, 1\ns_mov_b32 s11, 1\ns_mov_b64 exec, s[10:11]')
        s.gstore(f'buffer_store_dwordx4 v[56:59], v5, {WS}, s69 offen')
        A('s_mov_b64 exec, -1')
        s.stamp(7,vST)
        A(f's_and_b32 s8, s65, 7\ns_cmp_lg_u32 s8, s{sG}\ns_cbranch_scc1 L_tdone')
        gather_reduce(['s72','s73','s74','s75'],3)
        s.stamp(8,vST)
        s.round4(40,13)
        for r in range(4): A(f'v_mul_f32 v{40+r}, v{36+r}, v{40+r}')
        s.round4(40,13)
        for r in range(4): A(f'v_add_f32 v{40+r}, v{28+r}, v{40+r}')
        A('v_cvt_pk_bf16_f32 v44, v40, v41\nv_cvt_pk_bf16_f32 v45, v42, v43')
        A('s_mov_b32 s10, 0x000f000f\ns_mov_b32 s11, 0x000f000f\ns_mov_b64 exec, s[10:11]')
        A(f'buffer_store_dwordx2 v[44:45], v2, {SD}, 0 offen')
        A('s_mov_b64 exec, -1')
        A('s_cmp_lg_u32 s65, 0\ns_cbranch_scc1 L_tdone')
        A(f'v_mov_b32 v44, s{sT}\nv_mov_b32 v45, 0\ns_mov_b64 exec, 1\nbuffer_store_dword v44, v45, {WS}, 0 offen sc1\ns_mov_b64 exec, -1')
        s.stamp(9,vST)
        A('s_branch L_tdone')

        A('L_ffn2:')
        A(f's_lshl_b32 s66, s{sTW}, 10\ns_add_u32 s66, s66, {hex(WS_MOD+24*512)}\ns_add_u32 s67, s66, {8*512}')
        s.poll([(16,5,'s66',0),(20,5,'s67',0)],12)
        s.unpack2(16,24,25); s.unpack2(17,26,27)
        s.unpack2(20,28,29); s.unpack2(21,30,31)
        for r in range(4): A(f'v_add_f32 v{28+r}, 1.0, v{28+r}')
        s.round4(28,12)
        A(f'v_lshrrev_b32 v8, 5, v0\nv_and_b32 v9, 31, v0\nv_lshlrev_b32 v10, 11, v8\nv_lshlrev_b32 v11, 4, v9\ns_lshl_b32 s8, s{sTW}, 9\nv_add3_u32 v13, v10, v11, s8')
        A('v_lshlrev_b32 v10, 8, v8\nv_and_b32 v11, 15, v0\nv_lshlrev_b32 v11, 4, v11\nv_add_u32 v14, v10, v11')
        A(f's_lshl_b32 s70, s{sG}, 12\ns_add_u32 s70, s70, {hex(WS_X1)}\ns_lshl_b32 s71, s{sG}, 9\ns_add_u32 s71, s71, {hex(WS_XS)}')
        A(f'v_and_b32 v96, 31, v0\nv_lshlrev_b32 v96, 4, v96\nv_add_u32 v2, {L_PART}, v96')
        A(f's_lshl_b32 s8, s{sTW}, 8\ns_add_u32 s8, s8, {L_H2}\nv_lshrrev_b32 v97, 1, v96\nv_add_u32 v97, s8, v97')
        A('v_and_b32 v10, 1, v0\nv_lshlrev_b32 v10, 7, v10\nv_lshrrev_b32 v12, 4, v0\nv_lshlrev_b32 v12, 4, v12\nv_add3_u32 v98, v10, v12, s8')
        A(f'v_and_b32 v99, 15, v0\nv_mul_u32_u24 v99, 48, v99\ns_mul_i32 s8, s{sTW}, {16*48}\ns_mul_i32 s75, s65, 3072\ns_add_u32 s75, s75, s8\ns_add_u32 s75, s75, {hex(WS_YO)}')
        s.stamp(5,vST)
        s.waitflags4(F_O,8)
        s.poll([(16,13,'s70',0),(20,14,'s71',0)],10)
        s.stamp(6,vST)
        s.rowsum16([20,21])
        A('v_mul_f32 v20, 0x3b000000, v20\nv_mul_f32 v21, 0x3b000000, v21\nv_fma_f32 v21, -v20, v20, v21\nv_max_f32 v21, 0, v21')
        s.ln_final(20,21,12)
        s.unpack2(16,8,9); s.unpack2(17,10,11)
        s.ln_apply(8,20,21,12)
        s.mod_apply(8,28,24,12)
        A('ds_write_b64 v3, v[12:13]\ns_waitcnt lgkmcnt(0)')
        s.mm(4,2,T,8,ACC,R)
        s.part_write(R,6)
        s.setflag(F_T1,8,9,swave=sTW)
        s.waitflags4(F_T1,8,extra=s.part_read_list(32,2))
        s.stamp(7,vST)
        s.final_sum(32)
        s.round4(32,12)
        for r in range(4): A(f'v_mov_b32_dpp v{28+r}, v{32+r} row_shl:8 row_mask:0xf bank_mask:0xf bound_ctrl:0')
        s.silu4(32,16)
        s.round4(32,12)
        for r in range(4): A(f'v_mul_f32 v{32+r}, v{32+r}, v{28+r}')
        A('v_cvt_pk_bf16_f32 v12, v32, v33\nv_cvt_pk_bf16_f32 v13, v34, v35')
        A('ds_write_b64 v97, v[12:13]\ns_waitcnt lgkmcnt(0)')
        s.mm(98,1,RAW,8,ACC,None)
        s.publishR(lambda b,j: ACC+4*j+b,16,99,'s75','0xffff')
        s.stamp(9,vST)
        A('L_tdone:')
        s.stamp_flush(vST, 8)
        s.endpgm()

    def build(s):
        A=s.A
        s.prologue(); s.kv(); s.tile()
        A('L_exit:\ns_endpgm')
        body,nn=fix_hazards(A.L)
        hdr=[f'; @launch grid=(256,1,1) block=(512,1,1) lds={L_SIZE}', f'; roles: MF={I_MF} BB={I_BB} WQ={I_WQ} WO={I_WO} MR={I_MR} FFN={I_FFN}',
             '.amdgcn_target "amdgcn-amd-amdhsa--gfx950"','.text',f'.globl {NAME}_kernel','.p2align 8',f'.type {NAME}_kernel,@function',f'{NAME}_kernel:']
        ftr=f'''.section .rodata,"a"
.p2align 6
.amdhsa_kernel {NAME}_kernel
  .amdhsa_next_free_vgpr 256
  .amdhsa_next_free_sgpr 102
  .amdhsa_accum_offset 256
  .amdhsa_group_segment_fixed_size 0
  .amdhsa_kernarg_size 112
  .amdhsa_user_sgpr_count 2
  .amdhsa_user_sgpr_kernarg_segment_ptr 1
  .amdhsa_system_sgpr_workgroup_id_x 1
.end_amdhsa_kernel'''
        return '\n'.join(hdr+body)+'\n'+ftr+'\n', nn

def gen(out, prof=False, **opts):
    k=K(prof=prof,opts=opts)
    txt,nn=k.build()
    open(out,'w').write(txt)
    return txt.count('\n'),nn

if __name__=='__main__':
    import argparse
    ap=argparse.ArgumentParser()
    ap.add_argument('-o',default='k4.s'); ap.add_argument('--prof',action='store_true')
    ap.add_argument('opts',nargs='*')
    a=ap.parse_args()
    opts={}
    for kv in a.opts:
        k,v=kv.split('='); opts[k]=int(v) if v.lstrip('-').isdigit() else v
    print('written',a.o,gen(a.o,a.prof,**opts))
```

```python
import sys
sys.path.insert(0,'gen')
from asmlib import *
NAME='adaLN_cond__sliding_block_cached__glu_gated_swiglu__decode'

WS_MOD  = 0x1000
WS_Q    = 0x8000
WS_AS   = 0x10000
WS_AO   = 0xA0000
WS_X1   = 0xB8000
WS_XS   = 0xC0000
WS_XT   = 0xC1000
WS_MF   = 0xC4000
WS_YO   = 0xC8000
WS_PROF = 0x100000
WS_SIZE = 0x180000
L_Q=0x0; L_F=0x400; L_KM=0x500; L_KL=0x540; L_KO=0x600; L_ACT=0x2A00; L_PART=0x3400; L_OACT=0x3C00; L_H2=0x3E80; L_SIZE=0x4400
F_Q=0; F_M=4; F_O=8; F_T1=12; F_T2=16; F_KI=20; F_K=24; F_G=28; F_K2=32; F_P=36; F_M2=40
BSTR=384
sW=3; sG=4; sI=5; sE=6; sT=7
pX=16; pK=18; pV=20; pWQ=22; pWO=24; pW1=28; pW3=30; pW2=32; pC=34; pWM=36; pOUT=38; pDBG=40; pWS=42
WS='s[44:47]'; SA='s[48:51]'; SB='s[52:55]'; SC='s[56:59]'; SD='s[60:63]'
sTW=64; sSelLo=80; sSelHi=81; sHiMask=82; sFast=83; sCNT=84; sLog2e=85; sXCC=90
LOG2E='0x3fb8aa3b'
I_MF=2; I_BB=4; I_WQ=12; I_WO=20; I_MR=24; I_FFN=31

DEF=dict(thr=4, thr0=0, n0=0, thr_wq=4, thr_mf=4, thr_wo=4, thr_mr=4, thr_bb=4, pre_wq=4, pre_mf=4, gate_wq='issued', g2_wq='P', g2_mf='P', npipe_q=4,
         nt='4,4,4,4,4,4', ff=1, thr_w=3, thr_w0=3, gate_wo='start', gate_mr='start', gate_ffn='O', fast=1, gate_mf=1, pf=1, pf_i=24, pf_kb=48, pad=0, xdiag=0, probe='none')
ROLES=['MF','BB','WQ','WO','MR','FFN']; RCNT=[1,1,4,4,2,4]

class K:
    def __init__(s, prof=False, opts=None):
        s.A=Asm(); s.prof=prof; s.o=dict(DEF); s.o.update(opts or {})
    def srd(s, base, ptr, size):
        A=s.A
        A(f's_mov_b32 s{base}, s{ptr}\ns_mov_b32 s{base+1}, s{ptr+1}\ns_mov_b32 s{base+2}, {hex(size)}\ns_mov_b32 s{base+3}, 0x20000')
    def stamp(s, idx, vst):
        if not s.prof: return
        s.A(f's_memrealtime s[86:87]\ns_waitcnt lgkmcnt(0)\nv_writelane_b32 v{vst}, s86, {idx}')
    def stamp_flush(s, vst, vtmp):
        if not s.prof: return
        A=s.A
        A(f's_mov_b64 exec, -1')
        A(f's_lshl_b32 s88, s2, 3\ns_add_u32 s88, s88, s{sW}\ns_lshl_b32 s88, s88, 8\ns_add_u32 s88, s88, {hex(WS_PROF)}')
        A(f'v_mbcnt_lo_u32_b32 v{vtmp}, -1, 0\nv_mbcnt_hi_u32_b32 v{vtmp}, -1, v{vtmp}\nv_lshlrev_b32 v{vtmp}, 2, v{vtmp}')
        A(f'buffer_store_dword v{vst}, v{vtmp}, {WS}, s88 offen')
    def poll(s, loads, tmp, f4=(), pre=None, masked=()):
        A=s.A; lp=A.label('poll'); dn=A.label('pdone')
        A(f'{lp}:')
        for e in (pre or []): A(e)
        for (d,va,so,imm) in list(loads)+list(f4):
            A(f'buffer_load_dwordx4 v[{d}:{d+3}], v{va}, {WS}, {so} offen offset:{imm} sc1')
        if masked:
            A('s_mov_b32 exec_hi, 0')
            for (d,va,so,imm) in masked:
                A(f'buffer_load_dwordx4 v[{d}:{d+3}], v{va}, {WS}, {so} offen offset:{imm} sc1')
            A('s_mov_b32 exec_hi, -1')
        A('s_waitcnt vmcnt(0)')
        first=True
        for (d,va,so,imm) in list(loads)+list(masked):
            if first: A(f'v_xor_b32 v{tmp}, s{sT}, v{d+3}'); first=False
            else:
                A(f'v_xor_b32 v{tmp+1}, s{sT}, v{d+3}\nv_or_b32 v{tmp}, v{tmp}, v{tmp+1}')
        for (d,va,so,imm) in f4:
            A(f'v_perm_b32 v{tmp+1}, v{d+1}, v{d}, s{s.sF4a}\nv_perm_b32 v{tmp+2}, v{d+3}, v{d+2}, s{s.sF4b}')
            A(f'v_or_b32 v{tmp+1}, v{tmp+1}, v{tmp+2}')
            if first: A(f'v_xor_b32 v{tmp}, s{sT}, v{tmp+1}'); first=False
            else: A(f'v_xor_b32 v{tmp+1}, s{sT}, v{tmp+1}\nv_or_b32 v{tmp}, v{tmp}, v{tmp+1}')
        A(f'v_cmp_ne_u32 vcc, 0, v{tmp}')
        A(f's_cbranch_vccz {dn}')
        A(f's_sub_u32 s{sCNT}, s{sCNT}, 1\ns_cbranch_scc0 {lp}\ns_mov_b32 s{sCNT}, 0')
        A(f'{dn}:')
    def setflag(s, word, vaddr_tmp, vone, swave=None, val='1'):
        A=s.A
        if swave is None:
            A(f'v_mov_b32 v{vaddr_tmp}, {L_F+4*word}')
        else:
            A(f's_lshl_b32 s8, s{swave}, 2\ns_add_u32 s8, s8, {L_F+4*word}\nv_mov_b32 v{vaddr_tmp}, s8')
        A(f'v_mov_b32 v{vone}, {val}')
        A(f's_mov_b64 s[10:11], exec\ns_mov_b64 exec, 1')
        A(f'ds_write_b32 v{vaddr_tmp}, v{vone}')
        A(f's_mov_b64 exec, s[10:11]')
    def waitflags4(s, word, vt, extra=None):
        A=s.A; lp=A.label('lw'); dn=A.label('lwd')
        A(f'v_mov_b32 v{vt+4}, {L_F+4*word}')
        A(f'{lp}:')
        A(f'ds_read_b128 v[{vt}:{vt+3}], v{vt+4}')
        for e in (extra or []): A(e)
        A('s_waitcnt lgkmcnt(0)')
        A(f'v_min3_u32 v{vt}, v{vt}, v{vt+1}, v{vt+2}\nv_min_u32 v{vt}, v{vt}, v{vt+3}')
        A(f'v_cmp_ne_u32 vcc, 0, v{vt}')
        A(f's_cbranch_vccnz {dn}')
        A(f's_sub_u32 s{sCNT}, s{sCNT}, 1\ns_cbranch_scc0 {lp}\ns_mov_b32 s{sCNT}, 0')
        A(f'{dn}:')
    def waitflag1(s, word, vt):
        A=s.A; lp=A.label('lw'); dn=A.label('lwd')
        A(f'v_mov_b32 v{vt+1}, {L_F+4*word}')
        A(f'{lp}:')
        A(f'ds_read_b32 v{vt}, v{vt+1}')
        A('s_waitcnt lgkmcnt(0)')
        A(f'v_cmp_ne_u32 vcc, 0, v{vt}')
        A(f's_cbranch_vccnz {dn}')
        A(f's_sub_u32 s{sCNT}, s{sCNT}, 1\ns_cbranch_scc0 {lp}\ns_mov_b32 s{sCNT}, 0')
        A(f'{dn}:')
    def fast_from_flag(s, vt):
        s.A(f'v_readfirstlane_b32 s{sFast}, v{vt}\ns_lshr_b32 s{sFast}, s{sFast}, 1')
    def gstore(s, text):
        A=s.A
        if not s.o['fast']:
            A(text+' sc1'); return
        l1=A.label('slow'); l2=A.label('sd')
        A(f's_cmp_eq_u32 s{sFast}, 0\ns_cbranch_scc1 {l1}')
        A(text); A(f's_branch {l2}\n{l1}:'); A(text+' sc1'); A(f'{l2}:')
    def unpack2(s, src, lo, hi):
        s.A(f'v_lshlrev_b32 v{lo}, 16, v{src}\nv_and_b32 v{hi}, s{sHiMask}, v{src}')
    def round4(s, v, t):
        A=s.A
        A(f'v_cvt_pk_bf16_f32 v{t}, v{v}, v{v+1}\nv_cvt_pk_bf16_f32 v{t+1}, v{v+2}, v{v+3}')
        s.unpack2(t, v, v+1); s.unpack2(t+1, v+2, v+3)
    def round1(s, v, t):
        A=s.A
        A(f'v_cvt_pk_bf16_f32 v{t}, v{v}, v{v}\nv_lshlrev_b32 v{v}, 16, v{t}')
    def transpose(s, raw, dst):
        A=s.A
        for jj in range(4):
            for pp in range(4):
                a=raw+(2*pp)*4+jj; b=raw+(2*pp+1)*4+jj
                A(f'v_perm_b32 v{dst+(2*jj)*4+pp}, v{b}, v{a}, s{sSelLo}')
                A(f'v_perm_b32 v{dst+(2*jj+1)*4+pp}, v{b}, v{a}, s{sSelHi}')
    def rowsum16(s, regs, op='v_add_f32'):
        A=s.A
        for sh in (8,4,2,1):
            for r in regs:
                A(f'{op}_dpp v{r}, v{r}, v{r} row_ror:{sh} row_mask:0xf bank_mask:0xf')
    def swap16(s, regs, tmps, op='v_add_f32'):
        A=s.A
        for r,t in zip(regs,tmps): A(f'v_mov_b32 v{t}, v{r}')
        for r,t in zip(regs,tmps): A(f'v_permlane16_swap_b32 v{r}, v{t}')
        for r,t in zip(regs,tmps): A(f'{op} v{r}, v{r}, v{t}')
    def swap32(s, regs, tmps, op='v_add_f32'):
        A=s.A
        for r,t in zip(regs,tmps): A(f'v_mov_b32 v{t}, v{r}')
        for r,t in zip(regs,tmps): A(f'v_permlane32_swap_b32 v{r}, v{t}')
        for r,t in zip(regs,tmps): A(f'{op} v{r}, v{r}, v{t}')
    def mm(s, actaddr, nblk, T, act, acc, R):
        A=s.A
        for blk in range(nblk):
            A(f'ds_read_b128 v[{act+4*blk}:{act+4*blk+3}], v{actaddr} offset:{128*blk}')
        for blk in range(nblk):
            A(f's_waitcnt lgkmcnt({nblk-1-blk})')
            for j in range(8):
                c = '0' if blk==0 else f'v[{acc+4*j}:{acc+4*j+3}]'
                A(f'v_mfma_f32_16x16x32_bf16 v[{acc+4*j}:{acc+4*j+3}], v[{act+4*blk}:{act+4*blk+3}], v[{T+32*blk+4*j}:{T+32*blk+4*j+3}], {c}')
        if R is None: return
        for j in range(8):
            for b in range(2):
                A(f'v_add_f32_dpp v{R+8*b+j}, v{acc+4*j+2+b}, v{acc+4*j+b} row_shl:8 row_mask:0xf bank_mask:0xf')
    def part_write(s, R, vaddr):
        A=s.A
        A('s_mov_b64 exec, 0xff')
        A(f'ds_write_b128 v{vaddr}, v[{R}:{R+3}]\nds_write_b128 v{vaddr}, v[{R+4}:{R+7}] offset:16')
        A(f'ds_write_b128 v{vaddr}, v[{R+8}:{R+11}] offset:256\nds_write_b128 v{vaddr}, v[{R+12}:{R+15}] offset:272')
        A('s_mov_b64 exec, -1')
    def publishR(s, reg, G, vaddr, soff, mask):
        A=s.A
        idx=[(0,0),(0,2),(0,4),(0,6),(1,0),(1,2),(1,4),(1,6)]
        slots=[G+0,G+1,G+2,G+4,G+5,G+6,G+8,G+9]
        A(f'v_mov_b32 v{G+10}, 0')
        A(f'v_mov_b32 v{G+3}, s{sT}\nv_mov_b32 v{G+7}, s{sT}\nv_mov_b32 v{G+11}, s{sT}')
        for (b,j),d in zip(idx,slots):
            A(f'v_cvt_pk_bf16_f32 v{d}, v{reg(b,j)}, v{reg(b,j+1)}')
        A(f's_mov_b64 exec, {mask}')
        for k in range(3):
            A(f'buffer_store_dwordx4 v[{G+4*k}:{G+4*k+3}], v{vaddr}, {WS}, {soff} offen offset:{16*k} sc1')
        A('s_mov_b64 exec, -1')
    def get_tag(s):
        s.A(f's_waitcnt lgkmcnt(0)\ns_mul_i32 s{sT}, s{sE}, 1664525\ns_add_u32 s{sT}, s{sT}, 1013904223')

    def prologue(s):
        A=s.A
        A('s_cmp_ge_u32 s2, 256\ns_cbranch_scc1 L_exit')
        if s.o['pad'] or s.o['xdiag']: A('s_memrealtime s[94:95]')
        A('s_load_dwordx16 s[16:31], s[0:1], 0\ns_load_dwordx8 s[32:39], s[0:1], 64\ns_load_dwordx4 s[40:43], s[0:1], 96')
        A(f'v_lshrrev_b32 v1, 6, v0\nv_and_b32 v0, 63, v0\nv_readfirstlane_b32 s{sW}, v1')
        A(f's_and_b32 s{sG}, s2, 7\ns_lshr_b32 s{sI}, s2, 3')
        if s.o['pf']:
            A(f's_cmp_lg_u32 s{sW}, 7\ns_cbranch_scc1 L_nopf\ns_cmp_lt_u32 s{sI}, {s.o["pf_i"]}\ns_cbranch_scc1 L_nopf')
            A(f's_getpc_b64 s[92:93]\nL_pc:\ns_sub_u32 s92, s92, L_pc-{NAME}_kernel\ns_subb_u32 s93, s93, 0')
            A('v_lshlrev_b32 v7, 7, v0')
            for k in range((s.o['pf_kb']+7)//8):
                if k: A('v_add_u32 v7, 0x2000, v7')
                A(f'v_min_u32 v4, L_exit-{NAME}_kernel, v7\nv_mov_b32 v5, s93\nv_add_co_u32 v4, vcc, s92, v4\nv_addc_co_u32 v5, vcc, 0, v5, vcc')
                A(f'global_load_dword v{240+k}, v[4:5], off')
            A('L_nopf:')
        A(f's_cmp_lg_u32 s{sW}, 0\ns_cbranch_scc1 L_nz')
        A(f'v_lshlrev_b32 v8, 2, v0\nv_mov_b32 v9, 0\nds_write_b32 v8, v9 offset:{L_F}')
        A('L_nz:')
        A(f's_mov_b32 s{sSelLo}, 0x05040100\ns_mov_b32 s{sSelHi}, 0x07060302\ns_mov_b32 s{sHiMask}, 0xffff0000\ns_mov_b32 s{sCNT}, 200000\ns_mov_b32 s{sLog2e}, {LOG2E}')
        A(f's_getreg_b32 s{sXCC}, hwreg(HW_REG_XCC_ID, 0, 4)')
        if s.o['xdiag']:
            A(f's_cmp_eq_u32 s{sXCC}, s{sG}\ns_cbranch_scc1 L_xd2\ns_waitcnt lgkmcnt(0)\nL_xd1:\ns_memrealtime s[96:97]\ns_waitcnt lgkmcnt(0)\ns_sub_u32 s96, s96, s94\ns_cmp_lt_u32 s96, {s.o["xdiag"]}\ns_cbranch_scc1 L_xd1\nL_xd2:')
        A(f's_cmp_ge_u32 s{sW}, 4\ns_cbranch_scc1 L_tile')

    def endpgm(s):
        A=s.A
        if s.o['pad']:
            l=A.label('pad')
            A(f'{l}:\ns_memrealtime s[96:97]\ns_waitcnt lgkmcnt(0)\ns_sub_u32 s96, s96, s94\ns_cmp_lt_u32 s96, {s.o["pad"]}\ns_cbranch_scc1 {l}')
        A('s_endpgm')

    def post_kernarg(s):
        A=s.A
        A('s_waitcnt lgkmcnt(0)\ns_barrier')
        A(f's_load_dword s{sE}, s[{pWS}:{pWS+1}], 0')
        s.srd(44,pWS,WS_SIZE)

    def kv(s):
        A=s.A; o=s.o
        vK=1; vV=2; vQa=3; vKO=4; vST=31; Q=32; D=48; KR=64; VR=144; SP=224; ACC=64; S=8; S2=24; P=16; P2=24; vFa=28; vF=29
        NT=[int(x) for x in str(o['nt']).split(',')]; assert sum(a*b for a,b in zip(NT,RCNT))==64, NT
        if s.prof: A(f'v_mov_b32 v{vST}, 0')
        s.stamp(0,vST)
        A(f's_and_b32 s64, s{sI}, 1\ns_lshr_b32 s65, s{sI}, 1')
        A(f's_lshl_b32 s66, s64, 3\ns_add_u32 s66, s66, s{sG}\ns_lshl_b32 s66, s66, 23\ns_add_u32 s66, s66, {7<<20}')
        A(f's_lshr_b32 s67, s{sI}, 2\ns_add_u32 s67, s67, s{sI}\ns_add_u32 s67, s67, s{sG}\ns_and_b32 s67, s67, 3')
        A(f's_lshl_b32 s8, s{sW}, 12\ns_add_u32 s66, s66, s8')
        A(f'v_and_b32 v5, 3, v0\nv_lshlrev_b32 v5, 10, v5\nv_bfe_u32 v6, v0, 2, 2\nv_lshlrev_b32 v6, 8, v6\nv_lshrrev_b32 v7, 4, v0\nv_lshlrev_b32 v7, 4, v7\nv_add3_u32 v{vK}, v5, v6, v7')
        A(f'v_lshlrev_b32 v{vV}, 4, v0')
        A(f'v_mov_b32 v{vFa}, {L_F+4*F_Q}')
        ubs=[I_MF,I_BB,I_WQ,I_WO,I_MR]
        for r,ub in zip(ROLES,ubs): A(f's_cmp_lt_u32 s{sI}, {ub}\ns_cbranch_scc1 L_kv_{r}')
        def xt_publish():
            s.get_tag()
            l=A.label('nxt')
            A(f's_cmp_lg_u32 s{sW}, 3\ns_cbranch_scc1 {l}')
            A(f's_lshl_b32 s8, s{sG}, 9\ns_lshl_b32 s9, s{sI}, 4\ns_add_u32 s8, s8, s9\ns_add_u32 s8, s8, {hex(WS_XT)}')
            A(f'v_mov_b32 v8, s{sXCC}\nv_mov_b32 v9, 0\nv_mov_b32 v10, 0\nv_mov_b32 v11, s{sT}\nv_mov_b32 v12, 0')
            A(f's_mov_b64 exec, 1\nbuffer_store_dwordx4 v[8:11], v12, {WS}, s8 offen sc1\ns_mov_b64 exec, -1')
            A(f'{l}:')
        def role_issue(ri):
            r=ROLES[ri]; nt=NT[ri]; N=8*nt
            pre=sum(a*b for a,b in zip(NT[:ri],RCNT[:ri])); s0=sum(RCNT[:ri])
            A(f'L_kv_{r}:')
            A(f's_sub_u32 s8, s65, {s0}\ns_mul_i32 s8, s8, {nt*16384}\ns_add_u32 s66, s66, s8\ns_add_u32 s66, s66, {pre*16384}')
            if nt<4:
                for _ in range((3//nt)):
                    A(f's_sub_u32 s8, s67, {nt}\ns_cmp_ge_u32 s67, {nt}\ns_cselect_b32 s67, s8, s67')
            for t in range(nt):
                A(f's_add_u32 s68, s67, {t}\ns_sub_u32 s8, s68, {nt}\ns_cmp_ge_u32 s68, {nt}\ns_cselect_b32 s68, s8, s68\ns_lshl_b32 s68, s68, 14\ns_add_u32 s{70+t}, s66, s68')
            s.post_kernarg()
            if o['probe']!='none':
                if o['probe'] in ('V','K'):
                    s.srd(56,pV if o['probe']=='V' else pK,0x8000000)
                    A(f's_lshr_b32 s8, s2, 4\ns_lshl_b32 s8, s8, 23\ns_and_b32 s9, s2, 15\ns_lshl_b32 s9, s9, 18\ns_add_u32 s8, s8, s9')
                else:
                    off={'wsl':64<<20,'wsh':440<<20}[o['probe']]
                    A(f's_add_u32 s56, s{pWS}, {off}\ns_addc_u32 s57, s{pWS+1}, 0\ns_mov_b32 s58, 0x4000000\ns_mov_b32 s59, 0x20000')
                    A(f's_lshl_b32 s8, s2, 18')
                A(f's_lshl_b32 s9, s{sW}, 16\ns_add_u32 s8, s8, s9')
                for n in range(64):
                    A(f'buffer_load_dwordx4 v[{64+4*(n%32)}:{67+4*(n%32)}], v{vV}, {SC}, s8 offen nt\ns_add_u32 s8, s8, 1024')
                    if n>=16: A('s_waitcnt vmcnt(16)')
                A('s_waitcnt vmcnt(0)')
            s.srd(48,pK,0x8000000); s.srd(52,pV,0x8000000)
            thr={'MF':o['thr_mf'],'BB':o['thr_bb'],'WQ':o['thr_wq'],'WO':o['thr_wo'],'MR':o['thr_mr'],'FFN':o['thr']}[r]
            thr0,n0=(o['thr0'],o['n0']) if r not in ('MF','WQ') else (0,0)
            gates={}
            if r=='MF':
                gates={0:['G']}
                if o['g2_mf']!='none': gates.setdefault(min(o['pre_mf'],N-1),[]).append(o['g2_mf'])
            if r=='WQ':
                if o['gate_wq']!='none': gates={0:['G']}
                if o['g2_wq']!='none': gates.setdefault(min(o['pre_wq'],N-1),[]).append(o['g2_wq'])
            seq=[('K',t,kk) for t in range(nt) for kk in range(4)]+[('V',t,x) for t in range(nt) for x in range(4)]
            need_flags={'WO':[o['gate_wo']],'MR':[o['gate_mr']],'FFN':[o['gate_ffn']]}.get(r,[])
            nK=4*nt-1; nK2=8*nt-1
            lastgate=max([g for g in gates if gates[g]] or [0])
            def load(n):
                kind,t,x=seq[n]
                if kind=='K': A(f'buffer_load_dwordx4 v[{KR+16*t+4*x}:{KR+16*t+4*x+3}], v{vK}, {SA}, s{70+t} offen offset:{64*x} nt')
                else: A(f'buffer_load_dwordx4 v[{VR+16*t+4*x}:{VR+16*t+4*x+3}], v{vV}, {SB}, s{70+t} offen offset:{1024*x} nt')
            def post(n, st):
                if n==4*nt-1 and st: s.stamp(1,vST)
                if n==nK and 'K' in need_flags: s.setflag(F_K, 5, 6, swave=sW)
                if n==nK2 and 'K2' in need_flags: s.setflag(F_K2, 5, 6, swave=sW)
            done_xt=False; ffs=set(); qknown=False
            for n in range(N):
                th=thr0 if n<n0 else thr
                for gk in gates.get(n,[]):
                    if (n>0 or gk=='G') and not done_xt: xt_publish(); done_xt=True
                    if gk=='G': s.waitflags4(F_G,8)
                    elif gk=='Q': s.waitflag1(F_Q,8); qknown=True
                    elif gk=='P': s.waitflag1(F_P,8)
                waits = (not qknown or not o['ff']) and th and n+1>th and n<N-1 and n>=lastgate
                chk = waits and o['ff'] and done_xt
                if chk: A(f'ds_read_b32 v{vF}, v{vFa}')
                load(n)
                f1=min(thr0 if n0 else thr, 4) if (thr0 if n0 else thr) else 4
                if not done_xt and n+1>=min(f1,N): xt_publish(); done_xt=True
                post(n,True)
                if waits:
                    if chk:
                        A(f's_waitcnt vmcnt({th}) lgkmcnt(0)\nv_cmp_ne_u32 vcc, 0, v{vF}\ns_cbranch_vccnz L_ff_{r}_{n+1}'); ffs.add(n+1)
                    else: A(f's_waitcnt vmcnt({th})')
            A(f's_branch L_kvq_{nt}' if qknown else f's_branch L_kvj_{nt}')
            if ffs:
                for n in range(min(ffs),N):
                    if n in ffs: A(f'L_ff_{r}_{n}:')
                    load(n); post(n,False)
                A(f's_branch L_kvq_{nt}')
        for ri in (5,0,1,2,3,4): role_issue(ri)
        def tr_pp(raw,dst,pp):
            for jj in range(4):
                a=raw+(2*pp)*4+jj; b=raw+(2*pp+1)*4+jj
                A(f'v_perm_b32 v{dst+(2*jj)*4+pp}, v{b}, v{a}, s{sSelLo}')
                A(f'v_perm_b32 v{dst+(2*jj+1)*4+pp}, v{b}, v{a}, s{sSelHi}')
        def tr_odd_pp(raw,dst,pp):
            for jj in range(4):
                a=raw+(2*pp)*4+jj; b=raw+(2*pp+1)*4+jj
                A(f'v_perm_b32 v{dst+(2*jj)*2+pp}, v{b}, v{a}, s{sSelLo}')
                A(f'v_perm_b32 v{dst+(2*jj+1)*2+pp}, v{b}, v{a}, s{sSelHi}')
        def compute(nt):
            npair=nt//2; odd=nt&1; NV=4*nt
            vt=[SP if p==0 else VR+32*(p-1) for p in range(npair)]
            vto=SP if npair==0 else VR+32*(npair-1)
            def transposes(p,wait=True):
                for pp in range(4):
                    if wait: A(f's_waitcnt vmcnt({NV-8*p-2*pp-2})')
                    tr_pp(VR+32*p,vt[p],pp)
            def tr_odd(wait=True):
                for pp in range(2):
                    if wait: A(f's_waitcnt vmcnt({2-2*pp})')
                    tr_odd_pp(VR+32*npair,vto,pp)
            def mf_pair(p):
                for j in range(8):
                    c='0' if p==0 else f'v[{ACC+4*j}:{ACC+4*j+3}]'
                    A(f'v_mfma_f32_16x16x32_bf16 v[{ACC+4*j}:{ACC+4*j+3}], v[{vt[p]+4*j}:{vt[p]+4*j+3}], v[{P+4*p}:{P+4*p+3}], {c}')
            def mf_odd():
                pr=P2 if nt==5 else P+2*(nt-1)
                for j in range(8):
                    c='0' if npair==0 else f'v[{ACC+4*j}:{ACC+4*j+3}]'
                    A(f'v_mfma_f32_16x16x16_bf16 v[{ACC+4*j}:{ACC+4*j+3}], v[{vto+2*j}:{vto+2*j+1}], v[{pr}:{pr+1}], {c}')
            def consts():
                A(f'v_lshrrev_b32 v7, 4, v0\nv_lshlrev_b32 v7, 4, v7')
                A(f'v_and_b32 v5, 3, v0\nv_lshlrev_b32 v5, 8, v5\nv_add_u32 v{vQa}, v5, v7')
                A(f'v_and_b32 v5, 15, v0\nv_mul_u32_u24 v5, 576, v5\ns_mul_i32 s8, s{sW}, 2304\ns_add_u32 s8, s8, {L_KO}\nv_add3_u32 v{vKO}, v5, v7, s8')
                A(f'v_and_b32 v14, 3, v0\nv_lshlrev_b32 v14, 4, v14\ns_lshl_b32 s8, s{sW}, 2\nv_add_u32 v15, s8, v14')
                A('s_mov_b32 s10, 0x00f000f0\ns_mov_b32 s11, 0x00f000f0\ns_mov_b32 s12, 0x0f000f00\ns_mov_b32 s13, 0x0f000f00\ns_mov_b32 s14, 0xf000f000\ns_mov_b32 s15, 0xf000f000')
                A(f's_lshl_b32 s8, s{sG}, 2\ns_add_u32 s8, s8, s{sW}\ns_lshl_b32 s8, s8, 1\ns_add_u32 s8, s8, s64\ns_lshl_b32 s8, s8, 4\ns_add_u32 s8, s8, s65\ns_mul_i32 s76, s8, 576\ns_add_u32 s76, s76, {hex(WS_AS)}')
            A(f'L_kvj_{nt}:')
            s.stamp(2,vST)
            consts()
            A(f'ds_read_b32 v{vF}, v{vFa}\ns_waitcnt lgkmcnt(0)\nv_cmp_ne_u32 vcc, 0, v{vF}\ns_mov_b32 s77, 0\ns_cbranch_vccnz L_kvq2_{nt}')
            for p in range(npair): transposes(p)
            if odd: tr_odd()
            A('s_mov_b32 s77, 1')
            s.waitflag1(F_Q, 8)
            A(f's_branch L_kvq2_{nt}')
            A(f'L_kvq_{nt}:')
            s.stamp(2,vST)
            consts()
            A('s_mov_b32 s77, 0')
            A(f'L_kvq2_{nt}:')
            A(f'ds_read_b32 v8, v{vFa}')
            for kk in range(4):
                A(f'ds_read_b128 v[{Q+4*kk}:{Q+4*kk+3}], v{vQa} offset:{L_Q+64*kk}')
            A('s_waitcnt lgkmcnt(4)')
            s.fast_from_flag(8)
            s.stamp(3,vST)
            A(f's_waitcnt vmcnt({NV})')
            Dr=lambda t: (D+4*t if t<4 else S2)
            for kk in range(4):
                A(f's_waitcnt lgkmcnt({3-kk})')
                for t in range(nt):
                    c='0' if kk==0 else f'v[{Dr(t)}:{Dr(t)+3}]'
                    A(f'v_mfma_f32_16x16x32_bf16 v[{Dr(t)}:{Dr(t)+3}], v[{KR+16*t+4*kk}:{KR+16*t+4*kk+3}], v[{Q+4*kk}:{Q+4*kk+3}], {c}')
            nm=min(nt,4)
            msk=['','s[10:11]','s[12:13]','s[14:15]']
            if nm==1:
                for r in range(4): A(f'v_mov_b32 v{S+r}, v{D+r}')
            for t in range(1,nm):
                for r in range(4):
                    A(f'v_cndmask_b32 v{S+r}, v{(D if t==1 else S)+r}, v{D+4*t+r}, {msk[t]}')
            if nm<4:
                A('v_mov_b32 v12, 0xff800000')
                for t in range(nm,4):
                    for r in range(4): A(f'v_cndmask_b32 v{S+r}, v{S+r}, v12, {msk[t]}')
            s.round4(S,12)
            if nt==5: s.round4(S2,12)
            A('s_mov_b32 s8, 0x3db504f3')
            for r in range(4): A(f'v_mul_f32 v{S+r}, s8, v{S+r}')
            if nt==5:
                for r in range(4): A(f'v_mul_f32 v{S2+r}, s8, v{S2+r}')
            s.round4(S,12)
            if nt==5: s.round4(S2,12)
            A(f'v_max3_f32 v12, v{S}, v{S+1}, v{S+2}\nv_max_f32 v12, v12, v{S+3}')
            if nt==5: A(f'v_max3_f32 v12, v12, v{S2}, v{S2+1}\nv_max3_f32 v12, v12, v{S2+2}, v{S2+3}')
            A('v_max_f32_dpp v12, v12, v12 row_ror:4 row_mask:0xf bank_mask:0xf\nv_max_f32_dpp v12, v12, v12 row_ror:8 row_mask:0xf bank_mask:0xf')
            s.swap16([12],[13],'v_max_f32'); s.swap32([12],[13],'v_max_f32')
            A('s_mov_b64 exec, 0xf')
            A(f'ds_write_b32 v15, v12 offset:{L_KM}')
            A('s_mov_b64 exec, -1')
            s.setflag(F_M, 16, 17, swave=sW)
            s.waitflags4(F_M, 48, extra=[f'ds_read_b128 v[56:59], v14 offset:{L_KM}'])
            A('v_max3_f32 v12, v56, v57, v58\nv_max_f32 v12, v12, v59')
            s.stamp(4,vST)
            regs=[S+r for r in range(4)]+([S2+r for r in range(4)] if nt==5 else [])
            for r in regs: A(f'v_sub_f32 v{r}, v{r}, v12')
            for r in regs: A(f'v_mul_f32 v{r}, s{sLog2e}, v{r}')
            for r in regs: A(f'v_exp_f32 v{r}, v{r}')
            A(f'v_cvt_pk_bf16_f32 v{P}, v{S}, v{S+1}\nv_cvt_pk_bf16_f32 v{P+1}, v{S+2}, v{S+3}')
            A(f'v_add_f32 v13, v{S}, v{S+1}\nv_add_f32 v30, v{S+2}, v{S+3}\nv_add_f32 v13, v13, v30')
            if nt==5:
                A(f'v_add_f32 v30, v{S2}, v{S2+1}\nv_add_f32 v5, v{S2+2}, v{S2+3}\nv_add_f32 v30, v30, v5')
                A(f'v_cvt_pk_bf16_f32 v{P2}, v{S2}, v{S2+1}\nv_cvt_pk_bf16_f32 v{P2+1}, v{S2+2}, v{S2+3}')
                A('s_mov_b32 s10, 0x000f000f\ns_mov_b32 s11, 0x000f000f\nv_cndmask_b32 v30, 0, v30, s[10:11]\nv_add_f32 v13, v13, v30')
            for t in range(1,nm):
                A(f'v_mov_b32_dpp v{P+2*t}, v{P} row_shl:{4*t} row_mask:0xf bank_mask:0xf bound_ctrl:0')
                A(f'v_mov_b32_dpp v{P+2*t+1}, v{P+1} row_shl:{4*t} row_mask:0xf bank_mask:0xf bound_ctrl:0')
            def lsum():
                A('v_add_f32_dpp v13, v13, v13 row_ror:4 row_mask:0xf bank_mask:0xf\nv_add_f32_dpp v13, v13, v13 row_ror:8 row_mask:0xf bank_mask:0xf')
                s.swap16([13],[30]); s.swap32([13],[30])
                A('s_mov_b64 exec, 0xf')
                A(f'ds_write_b32 v15, v13 offset:{L_KL}')
                A('s_mov_b64 exec, -1')
            A(f's_cmp_eq_u32 s77, 1\ns_cbranch_scc1 L_kvpv_{nt}')
            lsum()
            for p in range(npair):
                transposes(p);
                if p==npair-1 and not odd: s.stamp(5,vST)
                mf_pair(p)
            if odd:
                tr_odd(); s.stamp(5,vST); mf_odd()
            A(f's_branch L_kvf')
            A(f'L_kvpv_{nt}:')
            for p in range(npair): mf_pair(p)
            if odd: mf_odd()
            lsum()
            s.stamp(5,vST)
            A(f's_branch L_kvf')
        for nt in sorted(set(NT)): compute(nt)
        A('L_kvf:')
        A(f's_mul_i32 s8, s{sW}, 576\ns_add_u32 s8, s8, {L_KO}\nv_and_b32 v24, 31, v0\nv_lshlrev_b32 v24, 4, v24\nv_add_u32 v24, s8, v24')
        A(f's_lshl_b32 s9, s{sW}, 4\ns_add_u32 s9, s9, {L_KL}\nv_mov_b32 v25, s9')
        A(f'v_lshlrev_b32 v57, 4, v0')
        G=52
        A(f'v_mov_b32 v{G+2}, 0\nv_mov_b32 v{G+3}, s{sT}')
        A(f'v_readlane_b32 s78, v12, s{sW}')
        A(f'v_mov_b32 v56, s78')
        A(f'v_mov_b32 v16, {L_F+4*F_O}\ns_lshl_b32 s8, s{sW}, 2\nv_add_u32 v16, s8, v16\nv_mov_b32 v17, 1')
        A('s_mov_b32 s10, 0x000f000f\ns_mov_b32 s11, 0x000f000f\ns_mov_b64 exec, s[10:11]')
        for j in range(8):
            A(f'ds_write_b128 v{vKO}, v[{ACC+4*j}:{ACC+4*j+3}] offset:{64*j}')
        A('s_mov_b64 exec, 1')
        A('ds_write_b32 v16, v17')
        A('s_mov_b64 exec, -1')
        O=32
        ex=[f'ds_read_b128 v[{O+4*w}:{O+4*w+3}], v24 offset:{2304*w}' for w in range(4)]+[f'ds_read_b128 v[48:51], v25']
        s.waitflags4(F_O, 16, extra=ex)
        for r in range(4):
            A(f'v_add_f32 v{O+r}, v{O+r}, v{O+4+r}\nv_add_f32 v{O+8+r}, v{O+8+r}, v{O+12+r}')
        A('v_add_f32 v48, v48, v49\nv_add_f32 v50, v50, v51')
        for r in range(4):
            A(f'v_add_f32 v{O+r}, v{O+r}, v{O+8+r}')
        A('v_add_f32 v48, v48, v50')
        A(f'v_cvt_pk_bf16_f32 v{G}, v{O}, v{O+1}\nv_cvt_pk_bf16_f32 v{G+1}, v{O+2}, v{O+3}')
        A('s_mov_b32 s10, 0\ns_mov_b32 s11, 1')
        A(f'v_cndmask_b32 v{G}, v{G}, v56, s[10:11]\nv_cndmask_b32 v{G+1}, v{G+1}, v48, s[10:11]')
        A('s_mov_b32 s10, -1\ns_mov_b32 s11, 1\ns_mov_b64 exec, s[10:11]')
        s.gstore(f'buffer_store_dwordx4 v[{G}:{G+3}], v57, {WS}, s76 offen')
        s.stamp(6,vST)
        s.stamp_flush(vST, 5)
        s.endpgm()

    def tile_consts(s):
        A=s.A
        A(f's_sub_u32 s{sTW}, s{sW}, 4')
        A(f's_mul_i32 s8, s{sTW}, 640\ns_add_u32 s8, s8, {L_ACT}')
        A(f'v_lshrrev_b32 v8, 5, v0\nv_and_b32 v9, 31, v0')
        A(f'v_mul_u32_u24 v10, {BSTR}, v8\nv_lshlrev_b32 v11, 3, v9\nv_add3_u32 v3, v10, v11, s8')
        A(f'v_and_b32 v10, 1, v0\nv_mul_u32_u24 v10, {BSTR}, v10\nv_bfe_u32 v11, v0, 1, 1\nv_lshlrev_b32 v11, 6, v11\nv_lshrrev_b32 v12, 4, v0\nv_lshlrev_b32 v12, 4, v12\nv_add3_u32 v7, v10, v11, v12')
        A(f'v_add_u32 v4, s8, v7')
        A(f'v_lshrrev_b32 v10, 4, v9\nv_lshlrev_b32 v10, 9, v10\nv_lshlrev_b32 v11, 8, v8\nv_and_b32 v12, 15, v0\nv_lshlrev_b32 v12, 4, v12\nv_add3_u32 v5, v10, v11, v12')
        A(f's_lshl_b32 s8, s{sTW}, 9\ns_add_u32 s8, s8, {L_PART}\nv_and_b32 v10, 7, v0\nv_lshlrev_b32 v10, 5, v10\nv_add_u32 v6, s8, v10')
    def wlane(s, dst, RS, cmask=7):
        A=s.A
        A(f'v_bfe_u32 v10, v0, 3, 1\nv_lshlrev_b32 v10, 5, v10\nv_lshrrev_b32 v11, 4, v0\nv_lshlrev_b32 v11, 3, v11\nv_add_u32 v10, v10, v11\nv_mul_u32_u24 v10, {RS}, v10\nv_and_b32 v11, {cmask}, v0\nv_lshlrev_b32 v11, 4, v11\nv_add_u32 v{dst}, v10, v11')
    def wloads(s, srd, vl, sbase, rowoffs, RS, raw, stmp=66, thr=0):
        A=s.A
        for n,ro in enumerate(rowoffs):
            if ro==0: so=f's{sbase}'
            else:
                A(f's_add_u32 s{stmp}, s{sbase}, {ro*RS}'); so=f's{stmp}'
            A(f'buffer_load_dwordx4 v[{raw+4*n}:{raw+4*n+3}], v{vl}, {srd}, {so} offen nt')
            if thr and n+1>thr and n+1<len(rowoffs): A(f's_waitcnt vmcnt({thr})')
    def xt_pre(s, d, va):
        return [f'buffer_load_dwordx4 v[{d}:{d+3}], v{va}, {WS}, s91 offen sc1']
    def xt_setup(s, va):
        s.A(f'v_and_b32 v{va}, 31, v0\nv_lshlrev_b32 v{va}, 4, v{va}\ns_lshl_b32 s91, s{sG}, 9\ns_add_u32 s91, s91, {hex(WS_XT)}')
    def xt_eval(s, d, t):
        A=s.A
        A(f'v_xor_b32 v{t}, s{sT}, v{d+3}\nv_xor_b32 v{t+1}, s{sXCC}, v{d}\nv_or_b32 v{t}, v{t}, v{t+1}\nv_cmp_ne_u32 vcc, 0, v{t}')
        A(f's_cmp_eq_u64 vcc, 0\ns_cselect_b32 s{sFast}, 1, 0')
    def ppoll(s, nset, setbase, setsize, loads, tmp, done):
        A=s.A; lp=A.label('pp'); fin=A.label('ppf')
        nl=len(loads)
        def issue(k):
            for (ro,va,so,imm) in loads:
                d=setbase+k*setsize+ro
                A(f'buffer_load_dwordx4 v[{d}:{d+3}], v{va}, {WS}, {so} offen offset:{imm} sc1')
        for k in range(nset): issue(k)
        labs=[A.label('ppd') for k in range(nset)]
        A(f'{lp}:')
        for k in range(nset):
            A(f's_waitcnt vmcnt({nl*(nset-1)})')
            first=True
            for (ro,va,so,imm) in loads:
                d=setbase+k*setsize+ro
                if first: A(f'v_xor_b32 v{tmp}, s{sT}, v{d+3}'); first=False
                else: A(f'v_xor_b32 v{tmp+1}, s{sT}, v{d+3}\nv_or_b32 v{tmp}, v{tmp}, v{tmp+1}')
            A(f'v_cmp_ne_u32 vcc, 0, v{tmp}')
            A(f's_cbranch_vccz {labs[k]}')
            issue(k)
        A(f's_sub_u32 s{sCNT}, s{sCNT}, 1\ns_cbranch_scc0 {lp}\ns_mov_b32 s{sCNT}, 0')
        for k in range(nset):
            A(f'{labs[k]}:')
            done(k)
            if k<nset-1: A(f's_branch {fin}')
        A(f'{fin}:')
    def qpoll(s, vST):
        A=s.A; dn=A.label('qd')
        A(f's_cmp_lg_u32 s{sTW}, 0\ns_cbranch_scc1 {dn}')
        A(f'v_lshrrev_b32 v8, 4, v0\nv_lshlrev_b32 v8, 9, v8\nv_and_b32 v9, 15, v0\nv_lshlrev_b32 v9, 4, v9\nv_add_u32 v8, v8, v9')
        A(f's_and_b32 s8, s{sI}, 1\ns_lshl_b32 s8, s8, 8\ns_lshl_b32 s66, s{sG}, 12\ns_add_u32 s66, s66, s8\ns_add_u32 s66, s66, {hex(WS_Q)}')
        A(f'v_lshlrev_b32 v9, 3, v0\nv_mov_b32 v10, {L_F+4*F_Q}')
        SB_=32
        def done(k):
            d=SB_+8*k
            A(f'ds_write_b64 v9, v[{d}:{d+1}] offset:{L_Q}\nds_write_b64 v9, v[{d+4}:{d+5}] offset:{L_Q+512}')
            A(f'v_or_b32 v11, v{d+2}, v{d+6}')
        s.ppoll(s.o['npipe_q'],SB_,8,[(0,8,'s66',0),(4,8,'s66',2048)],12,done)
        A('v_cmp_ne_u32 vcc, 0, v11\ns_cmp_lg_u64 vcc, 0\ns_cselect_b32 s9, 2, 1')
        A('v_mov_b32 v11, s9\ns_mov_b64 exec, 1\nds_write_b32 v10, v11\ns_mov_b64 exec, -1')
        s.stamp(4,vST)
        A(f'{dn}:')
    def final_sum(s, O):
        A=s.A
        for r in range(4):
            A(f'v_add_f32 v{O+r}, v{O+r}, v{O+4+r}\nv_add_f32 v{O+8+r}, v{O+8+r}, v{O+12+r}')
        for r in range(4):
            A(f'v_add_f32 v{O+r}, v{O+r}, v{O+8+r}')
    def final_tile(s, O, G):
        s.final_sum(O)
        s.A(f'v_cvt_pk_bf16_f32 v{G}, v{O}, v{O+1}\nv_cvt_pk_bf16_f32 v{G+1}, v{O+2}, v{O+3}')
    def part_read_list(s, O, va):
        return [f'ds_read_b128 v[{O+4*w}:{O+4*w+3}], v{va} offset:{512*w}' for w in range(4)]
    def ln_apply(s, X, sm, srs, t):
        A=s.A
        for r in range(4): A(f'v_sub_f32 v{X+r}, v{X+r}, v{sm}')
        s.round4(X,t)
        for r in range(4): A(f'v_mul_f32 v{X+r}, v{X+r}, v{srs}')
        s.round4(X,t)
    def mod_apply(s, X, C1, SH, t):
        A=s.A
        for r in range(4): A(f'v_mul_f32 v{X+r}, v{X+r}, v{C1+r}')
        s.round4(X,t)
        for r in range(4): A(f'v_add_f32 v{X+r}, v{X+r}, v{SH+r}')
        A(f'v_cvt_pk_bf16_f32 v{t}, v{X}, v{X+1}\nv_cvt_pk_bf16_f32 v{t+1}, v{X+2}, v{X+3}')
    def ln_final(s, mean, var, t):
        A=s.A
        s.round1(mean,t); s.round1(var,t)
        A(f'v_add_f32 v{var}, 0x3727c5ac, v{var}')
        s.round1(var,t)
        A(f'v_sqrt_f32 v{var}, v{var}')
        s.round1(var,t)
        A(f'v_rcp_f32 v{var}, v{var}')
    def silu4(s, X, t):
        A=s.A
        for r in range(4): A(f'v_mul_f32 v{t+r}, s{sLog2e}, v{X+r}')
        for r in range(4): A(f'v_exp_f32 v{t+r}, -v{t+r}')
        for r in range(4): A(f'v_add_f32 v{t+r}, 1.0, v{t+r}')
        for r in range(4): A(f'v_rcp_f32 v{t+r}, v{t+r}')
        for r in range(4): A(f'v_mul_f32 v{X+r}, v{X+r}, v{t+r}')
    def gate(s, g):
        if g=='K': s.waitflags4(F_K,8)
        elif g=='K2': s.waitflags4(F_K2,8)
        elif g=='O': s.waitflags4(F_O,8)

    def tile(s):
        A=s.A; o=s.o
        RAW=64; T=128; ACC=32; R=16
        vST=255
        A('L_tile:')
        if s.prof: A(f'v_mov_b32 v{vST}, 0')
        s.stamp(0,vST)
        s.tile_consts()
        s.post_kernarg()
        A(f's_cmp_lt_u32 s{sI}, {I_MF}\ns_cbranch_scc1 L_mf')
        A(f's_cmp_lt_u32 s{sI}, {I_BB}\ns_cbranch_scc1 L_bb')
        A(f's_cmp_lt_u32 s{sI}, {I_WQ}\ns_cbranch_scc1 L_wq')
        A(f's_cmp_lt_u32 s{sI}, {I_WO}\ns_cbranch_scc1 L_wo')
        A(f's_cmp_lt_u32 s{sI}, {I_MR}\ns_cbranch_scc1 L_mr')
        A(f's_cmp_lt_u32 s{sI}, {I_FFN}\ns_cbranch_scc1 L_ffn')
        s.get_tag()
        A('s_branch L_qpoll')
        A('L_bb:')
        s.get_tag()
        A(f's_cmp_eq_u32 s{sTW}, 0\ns_cbranch_scc1 L_qpoll\ns_branch L_tail')

        def modtile(mf):
            A('L_mf:' if mf else 'L_mr:')
            s.srd(56,pC,2048); s.srd(48,pWM,512*6144)
            if mf:
                A(f's_lshl_b32 s65, s{sG}, 1\ns_add_u32 s65, s65, s{sI}')
            else:
                A(f's_lshl_b32 s65, s{sG}, 2\ns_add_u32 s65, s65, s{sI}\ns_sub_u32 s65, s65, {I_WO-16}')
            A(f'v_lshrrev_b32 v8, 5, v0\nv_and_b32 v9, 31, v0\nv_lshlrev_b32 v10, 10, v8\nv_lshlrev_b32 v11, 3, v9\ns_lshl_b32 s8, s{sTW}, 8\nv_add3_u32 v12, v10, v11, s8')
            A(f'buffer_load_dwordx2 v[24:25], v12, {SC}, 0 offen')
            s.wlane(2,6144)
            A(f's_mul_i32 s67, s{sTW}, {128*6144}\ns_lshl_b32 s8, s65, 7\ns_add_u32 s67, s67, s8')
            rows=[64*blk+ii for blk in range(2) for ii in range(8)]
            if mf:
                s.wloads(SA,2,67,rows,6144,RAW,stmp=68)
                s.setflag(F_G,8,9,swave=sTW)
                s.get_tag()
            else:
                if o['gate_mr']!='start':
                    s.gate(o['gate_mr'])
                s.wloads(SA,2,67,rows,6144,RAW,stmp=68,thr=o['thr_w'])
                s.get_tag()
                s.qpoll(vST)
            A(f'v_and_b32 v200, 31, v0\nv_lshlrev_b32 v200, 4, v200\nv_add_u32 v201, {L_PART}, v200')
            A(f's_lshl_b32 s66, s65, 9\ns_add_u32 s66, s66, {hex(WS_MOD)}')
            A('s_waitcnt vmcnt(16)')
            s.unpack2(24,8,9); s.unpack2(25,10,11)
            s.silu4(8,16)
            A('v_cvt_pk_bf16_f32 v12, v8, v9\nv_cvt_pk_bf16_f32 v13, v10, v11')
            A('ds_write_b64 v3, v[12:13]')
            A('s_waitcnt vmcnt(8)')
            s.transpose(RAW,T)
            A('s_waitcnt vmcnt(0)')
            s.stamp(1,vST)
            s.transpose(RAW+32,T+32)
            A('s_waitcnt lgkmcnt(0)')
            s.mm(4,2,T,8,ACC,R)
            s.part_write(R,6)
            s.setflag(F_T1,8,9,swave=sTW)
            A(f's_cmp_lg_u32 s{sTW}, 0\ns_cbranch_scc1 L_tail')
            A(f'v_mov_b32 v18, 0\nv_mov_b32 v19, s{sT}')
            s.waitflags4(F_T1,8,extra=s.part_read_list(32,201))
            s.final_tile(32,16)
            A('s_mov_b32 exec_hi, 0')
            A(f'buffer_store_dwordx4 v[16:19], v200, {WS}, s66 offen sc1')
            A('s_mov_b32 exec_hi, -1')
            if mf and o['g2_mf']=='P': s.setflag(F_P,8,9)
            s.stamp(3,vST)
            A('s_branch L_qpoll' if mf else 's_branch L_tdone')
        modtile(True); modtile(False)

        A('L_wq:')
        s.srd(56,pX,2048); s.srd(48,pWQ,512*8192)
        A(f'v_lshrrev_b32 v8, 5, v0\nv_and_b32 v9, 31, v0\nv_lshlrev_b32 v10, 10, v8\nv_lshlrev_b32 v11, 3, v9\ns_lshl_b32 s8, s{sTW}, 8\nv_add3_u32 v12, v10, v11, s8\nv_lshlrev_b32 v11, 5, v9\nv_add_u32 v13, v10, v11')
        A(f'buffer_load_dwordx2 v[14:15], v12, {SC}, 0 offen\nbuffer_load_dwordx4 v[16:19], v13, {SC}, 0 offen\nbuffer_load_dwordx4 v[20:23], v13, {SC}, 0 offen offset:16')
        s.wlane(2,8192)
        A(f's_sub_u32 s69, s{sI}, {I_BB}')
        A(f's_mul_i32 s65, s{sTW}, {128*8192}\ns_lshl_b32 s8, s{sG}, 10\ns_lshl_b32 s9, s69, 7\ns_add_u32 s65, s65, s8\ns_add_u32 s65, s65, s9')
        s.wloads(SA,2,65,[64*blk+ii for blk in range(2) for ii in range(8)],8192,RAW)
        if o['gate_wq']=='issued': s.setflag(F_G,8,9,swave=sTW)
        A('s_waitcnt vmcnt(16)')
        for k in range(8): s.unpack2(16+k, 32+2*k, 33+2*k)
        A('v_add_f32 v48, v32, v33')
        for k in range(2,16): A(f'v_add_f32 v48, v48, v{32+k}')
        s.rowsum16([48]); s.swap16([48],[49])
        A('v_mul_f32 v48, 0x3b000000, v48')
        for k in range(16): A(f'v_sub_f32 v{32+k}, v{32+k}, v48')
        A('v_mul_f32 v50, v32, v32')
        for k in range(1,16): A(f'v_fmac_f32 v50, v{32+k}, v{32+k}')
        s.rowsum16([50]); s.swap16([50],[49])
        A('v_mul_f32 v50, 0x3b000000, v50')
        s.ln_final(48,50,49)
        s.unpack2(14,8,9); s.unpack2(15,10,11)
        s.ln_apply(8,48,50,12)
        A(f's_lshl_b32 s66, s{sTW}, 10\ns_add_u32 s66, s66, {hex(WS_MOD)}\ns_add_u32 s67, s66, {8*512}')
        s.xt_setup(203)
        A(f'v_and_b32 v200, 31, v0\nv_lshlrev_b32 v200, 4, v200\nv_add_u32 v201, {L_PART}, v200')
        A(f's_lshl_b32 s68, s{sG}, 12\ns_lshl_b32 s8, s69, 9\ns_add_u32 s68, s68, s8\ns_add_u32 s68, s68, {hex(WS_Q)}')
        s.get_tag()
        A('s_waitcnt vmcnt(8)')
        s.transpose(RAW,T)
        A('s_waitcnt vmcnt(0)')
        s.stamp(1,vST)
        if o['gate_wq']=='arrived': s.setflag(F_G,36,37,swave=sTW)
        s.transpose(RAW+32,T+32)
        s.poll([(20,5,'s66',0),(24,5,'s67',0)],12,pre=s.xt_pre(32,203))
        if o['gate_wq']=='mod': s.setflag(F_G,36,37,swave=sTW)
        if o['g2_wq']=='M': s.setflag(F_M2,36,37,swave=sTW)
        s.stamp(2,vST)
        s.unpack2(20,16,17); s.unpack2(21,18,19)
        s.unpack2(24,28,29); s.unpack2(25,30,31)
        for r in range(4): A(f'v_add_f32 v{28+r}, 1.0, v{28+r}')
        s.round4(28,12)
        s.mod_apply(8,28,16,12)
        A('ds_write_b64 v3, v[12:13]')
        s.xt_eval(32,14)
        A('s_waitcnt lgkmcnt(0)')
        s.mm(4,2,T,8,ACC,R)
        s.part_write(R,6)
        s.setflag(F_T1,8,9,swave=sTW)
        A(f's_cmp_lg_u32 s{sTW}, 0\ns_cbranch_scc1 L_tail')
        A(f'v_mov_b32 v18, s{sFast}\nv_mov_b32 v19, s{sT}')
        s.waitflags4(F_T1,8,extra=s.part_read_list(32,201))
        s.final_tile(32,16)
        A('s_mov_b32 exec_hi, 0')
        s.gstore(f'buffer_store_dwordx4 v[16:19], v200, {WS}, s68 offen')
        A('s_mov_b32 exec_hi, -1')
        if o['g2_wq']=='P': s.setflag(F_P,8,9)
        s.stamp(3,vST)
        A('s_branch L_qpoll')

        A('L_wo:')
        s.srd(48,pWO,4096*1024)
        A('v_bfe_u32 v10, v0, 4, 1\nv_lshlrev_b32 v10, 6, v10\nv_bfe_u32 v11, v0, 3, 1\nv_lshlrev_b32 v11, 1, v11\nv_lshrrev_b32 v12, 5, v0\nv_add3_u32 v10, v10, v11, v12\nv_lshlrev_b32 v10, 10, v10\nv_and_b32 v11, 7, v0\nv_lshlrev_b32 v11, 4, v11\nv_add_u32 v2, v10, v11')
        A(f's_sub_u32 s65, s{sI}, {I_WQ}\ns_lshr_b32 s65, s65, 1\ns_and_b32 s69, s{sI}, 1\ns_lshl_b32 s68, s{sG}, 2\ns_add_u32 s68, s68, s65')
        A(f's_lshl_b32 s67, s68, 17\ns_lshl_b32 s8, s69, 9\ns_add_u32 s67, s67, s8\ns_lshl_b32 s8, s{sTW}, 7\ns_add_u32 s67, s67, s8')
        if o['gate_wo']!='start':
            s.gate(o['gate_wo'])
        s.stamp(2,vST)
        s.wloads(SA,2,67,[32*(ii>>2)+8*(ii&3)+4*blk for blk in range(2) for ii in range(8)],1024,RAW,stmp=70,thr=o['thr_w'])
        s.get_tag()
        s.qpoll(vST)
        A('s_waitcnt vmcnt(8)')
        s.transpose(RAW,T)
        A('s_waitcnt vmcnt(0)')
        s.stamp(1,vST)
        s.transpose(RAW+32,T+32)
        A('s_branch L_wo2')

        A('L_ffn:')
        A(f's_mul_i32 s65, s{sG}, 7\ns_add_u32 s65, s65, s{sI}\ns_sub_u32 s65, s65, {I_MR}')
        s.srd(48,pW1,512*3584); s.srd(52,pW3,512*3584); s.srd(56,pW2,1792*1024)
        s.wlane(2,3584,cmask=3)
        A(f's_mul_i32 s67, s{sTW}, {128*3584}\ns_lshl_b32 s8, s65, 6\ns_add_u32 s67, s67, s8')
        A('v_lshrrev_b32 v10, 4, v0\nv_lshlrev_b32 v10, 13, v10\nv_and_b32 v11, 15, v0\nv_lshlrev_b32 v11, 4, v11\nv_add_u32 v1, v10, v11')
        A(f's_lshl_b32 s69, s65, 15\ns_lshl_b32 s8, s{sTW}, 8\ns_add_u32 s69, s69, s8')
        A('s_mov_b32 s72, 0x0f0f0f0f\ns_mov_b32 s73, 0x0f0f0f0f\ns_mov_b32 s74, 0xf0f0f0f0\ns_mov_b32 s75, 0xf0f0f0f0')
        s.get_tag()
        s.qpoll(vST)
        s.gate(o['gate_ffn'])
        s.stamp(2,vST)
        for blk in range(2):
            A('s_mov_b64 exec, s[72:73]')
            s.wloads(SA,2,67,[64*blk+ii for ii in range(8)],3584,RAW+32*blk,stmp=68)
            A('s_mov_b64 exec, s[74:75]')
            s.wloads(SB,2,67,[64*blk+ii for ii in range(8)],3584,RAW+32*blk,stmp=68)
        A('s_mov_b64 exec, -1')
        s.wloads(SC,1,69,list(range(8)),1024,192,stmp=68)
        A('s_waitcnt vmcnt(24)')
        s.transpose(RAW,T)
        A('s_waitcnt vmcnt(8)')
        s.transpose(RAW+32,T+32)
        A('s_waitcnt vmcnt(0)')
        s.stamp(1,vST)
        s.transpose(192,RAW)
        A('s_branch L_ffn2')

        A('L_qpoll:')
        s.qpoll(vST)
        A('s_branch L_tdone')
        A('L_tail:')
        A(f's_cmp_eq_u32 s{sTW}, 1\ns_cbranch_scc1 L_b1\ns_branch L_tdone')

        A('L_wo2:')
        A(f's_and_b32 s70, s{sTW}, 1\ns_lshr_b32 s71, s{sTW}, 1')
        A(f's_lshl_b32 s72, s68, 1\ns_add_u32 s72, s72, s70\ns_mul_i32 s72, s72, {16*576}\ns_add_u32 s72, s72, {hex(WS_AS)}')
        A(f's_lshl_b32 s8, s71, 8\ns_add_u32 s73, s72, s8\ns_add_u32 s74, s73, {2*2304}')
        A('v_lshrrev_b32 v8, 4, v0\nv_and_b32 v9, 15, v0\nv_mul_u32_u24 v10, 576, v8\nv_lshlrev_b32 v11, 4, v9\nv_add_u32 v12, v10, v11')
        A('v_and_b32 v11, 3, v0\nv_mul_u32_u24 v11, 2304, v11\nv_add3_u32 v13, v10, v11, 0\nv_add_u32 v13, 512, v13')
        A(f's_mul_i32 s8, s70, {BSTR}\ns_lshl_b32 s9, s71, 7\ns_add_u32 s8, s8, s9\ns_add_u32 s8, s8, {L_OACT}\nv_lshlrev_b32 v14, 3, v9\nv_add_u32 v14, s8, v14')
        A(f'v_add_u32 v15, {L_OACT}, v7')
        A(f'v_and_b32 v2, 7, v0\nv_mul_u32_u24 v2, 48, v2\ns_lshl_b32 s8, s69, 5\ns_lshl_b32 s9, s{sTW}, 3\ns_add_u32 s8, s8, s9\ns_mul_i32 s8, s8, 48\ns_mul_i32 s75, s68, 3072\ns_add_u32 s75, s75, s8\ns_add_u32 s75, s75, {hex(WS_AO)}')
        A('v_mov_b32 v56, v12')
        s.waitflags4(F_O,8)
        s.poll([(32,56,'s73',0),(36,56,'s73',2304),(40,56,'s74',0),(44,56,'s74',2304),(48,13,'s72',0)],8)
        s.stamp(5,vST)
        A('v_mov_b32 v50, v48')
        A('v_max_f32_dpp v50, v50, v50 quad_perm:[1,0,3,2] row_mask:0xf bank_mask:0xf\nv_max_f32_dpp v50, v50, v50 quad_perm:[2,3,0,1] row_mask:0xf bank_mask:0xf')
        s.swap16([50],[51],'v_max_f32'); s.swap32([50],[51],'v_max_f32')
        A(f'v_sub_f32 v48, v48, v50\nv_mul_f32 v48, s{sLog2e}, v48\nv_exp_f32 v48, v48')
        A('v_mul_f32 v49, v48, v49')
        A('v_add_f32_dpp v49, v49, v49 quad_perm:[1,0,3,2] row_mask:0xf bank_mask:0xf\nv_add_f32_dpp v49, v49, v49 quad_perm:[2,3,0,1] row_mask:0xf bank_mask:0xf')
        s.swap16([49],[51]); s.swap32([49],[51])
        A('v_rcp_f32 v49, v49\nv_mul_f32 v48, v48, v49')
        for q in range(4):
            s.unpack2(32+4*q, 16, 17); s.unpack2(33+4*q, 18, 19)
            for e in range(4):
                op='v_mul_f32_dpp' if q==0 else 'v_fmac_f32_dpp'
                A(f'{op} v{20+e}, v48, v{16+e} quad_perm:[{q},{q},{q},{q}] row_mask:0xf bank_mask:0xf')
        s.swap16([20,21,22,23],[16,17,18,19]); s.swap32([20,21,22,23],[16,17,18,19])
        A('v_cvt_pk_bf16_f32 v16, v20, v21\nv_cvt_pk_bf16_f32 v17, v22, v23')
        A('s_mov_b64 exec, 0xffff\nds_write_b64 v14, v[16:17]\ns_mov_b64 exec, -1')
        s.setflag(F_T2,8,9,swave=sTW)
        s.waitflags4(F_T2,8)
        s.mm(15,2,T,8,ACC,R)
        s.publishR(lambda b,j: R+8*b+j,32,2,'s75','0xff')
        s.stamp(6,vST)
        A('s_branch L_tdone')

        A('L_b1:')
        A(f's_sub_u32 s8, s{sI}, 8\ns_cmp_ge_u32 s{sI}, {I_WO}\ns_cselect_b32 s65, s8, s{sI}')
        s.srd(56,pX,2048); s.srd(60,pOUT,2048)
        A('v_and_b32 v8, 3, v0\nv_bfe_u32 v9, v0, 2, 2\nv_lshrrev_b32 v10, 4, v0\nv_lshrrev_b32 v11, 5, v0\nv_bfe_u32 v12, v0, 4, 1')
        A('v_lshlrev_b32 v13, 10, v11\nv_lshlrev_b32 v14, 4, v8\nv_lshlrev_b32 v15, 3, v12\nv_add3_u32 v13, v13, v14, v15\ns_lshl_b32 s8, s65, 6\nv_add_u32 v2, s8, v13')
        A(f'buffer_load_dwordx2 v[16:17], v2, {SC}, 0 offen')
        A('v_lshlrev_b32 v13, 8, v11\nv_lshlrev_b32 v14, 5, v8\nv_lshlrev_b32 v15, 4, v12\nv_add3_u32 v13, v13, v14, v15\ns_and_b32 s8, s65, 1\ns_lshl_b32 s8, s8, 7\nv_add_u32 v3, s8, v13')
        A(f's_lshr_b32 s8, s65, 1\ns_lshl_b32 s8, s8, 9\ns_add_u32 s66, s8, {hex(WS_MOD+16*512)}\ns_add_u32 s67, s66, {24*512}')
        A('v_lshlrev_b32 v13, 11, v11\nv_lshlrev_b32 v14, 5, v8\nv_lshlrev_b32 v15, 4, v12\nv_add3_u32 v13, v13, v14, v15\ns_lshl_b32 s8, s65, 7\nv_add_u32 v4, s8, v13')
        A(f's_lshl_b32 s68, s{sG}, 12\ns_add_u32 s68, s68, {hex(WS_X1)}')
        A('v_lshlrev_b32 v13, 8, v11\ns_lshl_b32 s8, s65, 4\nv_add_u32 v5, s8, v13')
        A(f's_lshl_b32 s69, s{sG}, 9\ns_add_u32 s69, s69, {hex(WS_XS)}')
        A('v_lshlrev_b32 v13, 2, v10\nv_add_u32 v13, v13, v9\nv_mul_u32_u24 v13, 3072, v13\nv_mul_u32_u24 v14, 48, v8\ns_mul_i32 s8, s65, 192\nv_add3_u32 v6, v13, v14, s8')
        A(f's_mov_b32 s70, {hex(WS_AO)}\ns_mov_b32 s71, {hex(WS_AO+16*3072)}')
        A(f's_mov_b32 s72, {hex(WS_YO)}\ns_mov_b32 s73, {hex(WS_YO+16*3072)}\ns_mov_b32 s74, {hex(WS_YO+32*3072)}\ns_mov_b32 s75, {hex(WS_YO+48*3072)}')
        SEL=64
        A('v_bfe_u32 v13, v0, 1, 3\nv_and_b32 v14, 1, v0\nv_mov_b32 v15, 0x3f80\nv_mov_b32 v7, 0x3f800000\nv_cmp_eq_u32 vcc, 1, v14\nv_cndmask_b32 v15, v15, v7, vcc')
        for kind in range(3):
            for pp in range(4):
                x=3*kind+pp
                d=SEL+4*kind+pp
                if pp==3 or x>7: A(f'v_mov_b32 v{d}, 0')
                else: A(f'v_cmp_eq_u32 vcc, {x}, v13\nv_cndmask_b32 v{d}, 0, v15, vcc')
        s.poll([(20,3,'s66',0),(24,3,'s67',0)],13)
        s.unpack2(16,28,29); s.unpack2(17,30,31)
        s.unpack2(20,32,33); s.unpack2(21,34,35)
        s.unpack2(24,36,37); s.unpack2(25,38,39)
        s.stamp(5,vST)
        GA=80
        def gather_reduce(bases, nfull):
            full=[(GA+12*st+4*k,6,bases[st],16*k) for st in range(nfull) for k in range(3)]
            mk=[(GA+12*st+4*k,6,bases[st],16*k) for st in range(nfull,len(bases)) for k in range(3)]
            for (d,_,_,_) in mk:
                A(f'v_mov_b32 v{d}, 0\nv_mov_b32 v{d+1}, 0\nv_mov_b32 v{d+2}, 0\nv_mov_b32 v{d+3}, s{sT}')
            s.poll(full,13,masked=mk)
            n=3*len(bases)
            for k in range(n): A(f'v_mov_b32 v{GA+4*k+3}, 0')
            for k in range(n):
                acc=40 if k%2==0 else 44
                c='0' if k<2 else f'v[{acc}:{acc+3}]'
                A(f'v_mfma_f32_16x16x32_bf16 v[{acc}:{acc+3}], v[{SEL+4*(k%3)}:{SEL+4*(k%3)+3}], v[{GA+4*k}:{GA+4*k+3}], {c}')
            for r in range(4): A(f'v_add_f32 v{40+r}, v{40+r}, v{44+r}')
            for sh in (4,8):
                for r in range(4):
                    A(f'v_add_f32_dpp v{40+r}, v{40+r}, v{40+r} row_ror:{sh} row_mask:0xf bank_mask:0xf')
        s.waitflags4(F_O,48)
        s.waitflag1(F_Q,48); s.fast_from_flag(48)
        A(f'v_mov_b32 v58, 0\nv_mov_b32 v59, s{sT}')
        gather_reduce(['s70','s71'],2)
        s.stamp(6,vST)
        s.round4(40,13)
        for r in range(4): A(f'v_mul_f32 v{40+r}, v{32+r}, v{40+r}')
        s.round4(40,13)
        for r in range(4): A(f'v_add_f32 v{40+r}, v{28+r}, v{40+r}')
        A('v_cvt_pk_bf16_f32 v44, v40, v41\nv_cvt_pk_bf16_f32 v45, v42, v43')
        A(f'v_mov_b32 v46, 0\nv_mov_b32 v47, s{sT}')
        A('s_mov_b32 s10, 0x000f000f\ns_mov_b32 s11, 0x000f000f\ns_mov_b64 exec, s[10:11]')
        s.gstore(f'buffer_store_dwordx4 v[44:47], v4, {WS}, s68 offen')
        A('s_mov_b64 exec, -1')
        s.unpack2(44,28,29); s.unpack2(45,30,31)
        A('v_add_f32 v56, v28, v29\nv_add_f32 v57, v30, v31\nv_add_f32 v56, v56, v57')
        A('v_mul_f32 v57, v28, v28\nv_fmac_f32 v57, v29, v29\nv_fmac_f32 v57, v30, v30\nv_fmac_f32 v57, v31, v31')
        for qp in ('[1,0,3,2]','[2,3,0,1]'):
            for r in (56,57): A(f'v_add_f32_dpp v{r}, v{r}, v{r} quad_perm:{qp} row_mask:0xf bank_mask:0xf')
        s.swap16([56,57],[52,53])
        A('s_mov_b32 s10, 1\ns_mov_b32 s11, 1\ns_mov_b64 exec, s[10:11]')
        s.gstore(f'buffer_store_dwordx4 v[56:59], v5, {WS}, s69 offen')
        A('s_mov_b64 exec, -1')
        s.stamp(7,vST)
        A(f's_and_b32 s8, s65, 7\ns_cmp_lg_u32 s8, s{sG}\ns_cbranch_scc1 L_tdone')
        gather_reduce(['s72','s73','s74','s75'],3)
        s.stamp(8,vST)
        s.round4(40,13)
        for r in range(4): A(f'v_mul_f32 v{40+r}, v{36+r}, v{40+r}')
        s.round4(40,13)
        for r in range(4): A(f'v_add_f32 v{40+r}, v{28+r}, v{40+r}')
        A('v_cvt_pk_bf16_f32 v44, v40, v41\nv_cvt_pk_bf16_f32 v45, v42, v43')
        A('s_mov_b32 s10, 0x000f000f\ns_mov_b32 s11, 0x000f000f\ns_mov_b64 exec, s[10:11]')
        A(f'buffer_store_dwordx2 v[44:45], v2, {SD}, 0 offen')
        A('s_mov_b64 exec, -1')
        A('s_cmp_lg_u32 s65, 0\ns_cbranch_scc1 L_tdone')
        A(f'v_mov_b32 v44, s{sT}\nv_mov_b32 v45, 0\ns_mov_b64 exec, 1\nbuffer_store_dword v44, v45, {WS}, 0 offen sc1\ns_mov_b64 exec, -1')
        s.stamp(9,vST)
        A('s_branch L_tdone')

        A('L_ffn2:')
        A(f's_lshl_b32 s66, s{sTW}, 10\ns_add_u32 s66, s66, {hex(WS_MOD+24*512)}\ns_add_u32 s67, s66, {8*512}')
        s.poll([(16,5,'s66',0),(20,5,'s67',0)],12)
        s.unpack2(16,24,25); s.unpack2(17,26,27)
        s.unpack2(20,28,29); s.unpack2(21,30,31)
        for r in range(4): A(f'v_add_f32 v{28+r}, 1.0, v{28+r}')
        s.round4(28,12)
        A(f'v_lshrrev_b32 v8, 5, v0\nv_and_b32 v9, 31, v0\nv_lshlrev_b32 v10, 11, v8\nv_lshlrev_b32 v11, 4, v9\ns_lshl_b32 s8, s{sTW}, 9\nv_add3_u32 v13, v10, v11, s8')
        A('v_lshlrev_b32 v10, 8, v8\nv_and_b32 v11, 15, v0\nv_lshlrev_b32 v11, 4, v11\nv_add_u32 v14, v10, v11')
        A(f's_lshl_b32 s70, s{sG}, 12\ns_add_u32 s70, s70, {hex(WS_X1)}\ns_lshl_b32 s71, s{sG}, 9\ns_add_u32 s71, s71, {hex(WS_XS)}')
        A(f'v_and_b32 v96, 31, v0\nv_lshlrev_b32 v96, 4, v96\nv_add_u32 v2, {L_PART}, v96')
        A(f's_lshl_b32 s8, s{sTW}, 8\ns_add_u32 s8, s8, {L_H2}\nv_lshrrev_b32 v97, 1, v96\nv_add_u32 v97, s8, v97')
        A('v_and_b32 v10, 1, v0\nv_lshlrev_b32 v10, 7, v10\nv_lshrrev_b32 v12, 4, v0\nv_lshlrev_b32 v12, 4, v12\nv_add3_u32 v98, v10, v12, s8')
        A(f'v_and_b32 v99, 15, v0\nv_mul_u32_u24 v99, 48, v99\ns_mul_i32 s8, s{sTW}, {16*48}\ns_mul_i32 s75, s65, 3072\ns_add_u32 s75, s75, s8\ns_add_u32 s75, s75, {hex(WS_YO)}')
        s.stamp(5,vST)
        s.waitflags4(F_O,8)
        s.poll([(16,13,'s70',0),(20,14,'s71',0)],10)
        s.stamp(6,vST)
        s.rowsum16([20,21])
        A('v_mul_f32 v20, 0x3b000000, v20\nv_mul_f32 v21, 0x3b000000, v21\nv_fma_f32 v21, -v20, v20, v21\nv_max_f32 v21, 0, v21')
        s.ln_final(20,21,12)
        s.unpack2(16,8,9); s.unpack2(17,10,11)
        s.ln_apply(8,20,21,12)
        s.mod_apply(8,28,24,12)
        A('ds_write_b64 v3, v[12:13]\ns_waitcnt lgkmcnt(0)')
        s.mm(4,2,T,8,ACC,R)
        s.part_write(R,6)
        s.setflag(F_T1,8,9,swave=sTW)
        s.waitflags4(F_T1,8,extra=s.part_read_list(32,2))
        s.stamp(7,vST)
        s.final_sum(32)
        s.round4(32,12)
        for r in range(4): A(f'v_mov_b32_dpp v{28+r}, v{32+r} row_shl:8 row_mask:0xf bank_mask:0xf bound_ctrl:0')
        s.silu4(32,16)
        s.round4(32,12)
        for r in range(4): A(f'v_mul_f32 v{32+r}, v{32+r}, v{28+r}')
        A('v_cvt_pk_bf16_f32 v12, v32, v33\nv_cvt_pk_bf16_f32 v13, v34, v35')
        A('ds_write_b64 v97, v[12:13]\ns_waitcnt lgkmcnt(0)')
        s.mm(98,1,RAW,8,ACC,None)
        s.publishR(lambda b,j: ACC+4*j+b,16,99,'s75','0xffff')
        s.stamp(9,vST)
        A('L_tdone:')
        s.stamp_flush(vST, 8)
        s.endpgm()

    def build(s):
        A=s.A
        s.prologue(); s.kv(); s.tile()
        A('L_exit:\ns_endpgm')
        body,nn=fix_hazards(A.L)
        hdr=[f'; @launch grid=(256,1,1) block=(512,1,1) lds={L_SIZE}', f'; roles: MF={I_MF} BB={I_BB} WQ={I_WQ} WO={I_WO} MR={I_MR} FFN={I_FFN}', f'; nt: {s.o["nt"]}',
             '.amdgcn_target "amdgcn-amd-amdhsa--gfx950"','.text',f'.globl {NAME}_kernel','.p2align 8',f'.type {NAME}_kernel,@function',f'{NAME}_kernel:']
        ftr=f'''.section .rodata,"a"
.p2align 6
.amdhsa_kernel {NAME}_kernel
  .amdhsa_next_free_vgpr 256
  .amdhsa_next_free_sgpr 102
  .amdhsa_accum_offset 256
  .amdhsa_group_segment_fixed_size 0
  .amdhsa_kernarg_size 112
  .amdhsa_user_sgpr_count 2
  .amdhsa_user_sgpr_kernarg_segment_ptr 1
  .amdhsa_system_sgpr_workgroup_id_x 1
.end_amdhsa_kernel'''
        return '\n'.join(hdr+body)+'\n'+ftr+'\n', nn

def gen(out, prof=False, **opts):
    k=K(prof=prof,opts=opts)
    txt,nn=k.build()
    open(out,'w').write(txt)
    return txt.count('\n'),nn

if __name__=='__main__':
    import argparse
    ap=argparse.ArgumentParser()
    ap.add_argument('-o',default='k5.s'); ap.add_argument('--prof',action='store_true')
    ap.add_argument('opts',nargs='*')
    a=ap.parse_args()
    opts={}
    for kv in a.opts:
        k,v=kv.split('='); opts[k]=int(v) if v.lstrip('-').isdigit() else v
    print('written',a.o,gen(a.o,a.prof,**opts))
```

```python
import sys
sys.path.insert(0,'gen')
from asmlib import *
NAME='adaLN_cond__sliding_block_cached__glu_gated_swiglu__decode'

WS_MOD  = 0x1000
WS_Q    = 0x8000
WS_AS   = 0x10000
WS_AO   = 0xA0000
WS_X1   = 0xB8000
WS_XS   = 0xC0000
WS_XT   = 0xC1000
WS_MF   = 0xC4000
WS_YO   = 0xC8000
WS_PROF = 0x100000
WS_SIZE = 0x180000
L_Q=0x0; L_F=0x400; L_KM=0x500; L_KL=0x540; L_KO=0x600; L_ACT=0x2A00; L_PART=0x3400; L_OACT=0x3C00; L_H2=0x3E80; L_SIZE=0x4400
F_Q=0; F_M=4; F_O=8; F_T1=12; F_T2=16; F_KI=20; F_K=24; F_G=28; F_K2=32; F_P=36; F_M2=40
BSTR=384
sW=3; sG=4; sI=5; sE=6; sT=7
pX=16; pK=18; pV=20; pWQ=22; pWO=24; pW1=28; pW3=30; pW2=32; pC=34; pWM=36; pOUT=38; pDBG=40; pWS=42
WS='s[44:47]'; SA='s[48:51]'; SB='s[52:55]'; SC='s[56:59]'; SD='s[60:63]'
sTW=64; sSelLo=80; sSelHi=81; sHiMask=82; sFast=83; sCNT=84; sLog2e=85; sXCC=90
LOG2E='0x3fb8aa3b'
I_MF=2; I_BB=4; I_WQ=12; I_WO=20; I_MR=24; I_FFN=31

DEF=dict(thr=4, thr0=0, n0=0, thr_wq=4, thr_mf=4, thr_wo=4, thr_mr=4, thr_bb=4, pre_wq=4, pre_mf=4, gate_wq='issued', g2_wq='P', g2_mf='P', npipe_q=4,
         nt='4,4,4,4,4,4', ff=1, thr_w=3, thr_w0=3, gate_wo='start', gate_mr='start', gate_ffn='O', fast=1, gate_mf=1, pf=1, pf_i=24, pf_kb=48, pad=0, xdiag=0, probe='none', enc=-1, enc_st=5)
ROLES=['MF','BB','WQ','WO','MR','FFN']; RCNT=[1,1,4,4,2,4]

class K:
    def __init__(s, prof=False, opts=None):
        s.A=Asm(); s.prof=prof; s.o=dict(DEF); s.o.update(opts or {})
    def srd(s, base, ptr, size):
        A=s.A
        A(f's_mov_b32 s{base}, s{ptr}\ns_mov_b32 s{base+1}, s{ptr+1}\ns_mov_b32 s{base+2}, {hex(size)}\ns_mov_b32 s{base+3}, 0x20000')
    def stamp(s, idx, vst):
        if s.o['enc']>=0 and idx==s.o['enc_st'] and vst==31:
            s.A('s_memrealtime s[96:97]\ns_waitcnt lgkmcnt(0)\ns_sub_u32 s98, s96, s94')
        if not s.prof: return
        s.A(f's_memrealtime s[86:87]\ns_waitcnt lgkmcnt(0)\nv_writelane_b32 v{vst}, s86, {idx}')
    def stamp_flush(s, vst, vtmp):
        if not s.prof: return
        A=s.A
        A(f's_mov_b64 exec, -1')
        A(f's_lshl_b32 s88, s2, 3\ns_add_u32 s88, s88, s{sW}\ns_lshl_b32 s88, s88, 8\ns_add_u32 s88, s88, {hex(WS_PROF)}')
        A(f'v_mbcnt_lo_u32_b32 v{vtmp}, -1, 0\nv_mbcnt_hi_u32_b32 v{vtmp}, -1, v{vtmp}\nv_lshlrev_b32 v{vtmp}, 2, v{vtmp}')
        A(f'buffer_store_dword v{vst}, v{vtmp}, {WS}, s88 offen')
    def poll(s, loads, tmp, f4=(), pre=None, masked=()):
        A=s.A; lp=A.label('poll'); dn=A.label('pdone')
        A(f'{lp}:')
        for e in (pre or []): A(e)
        for (d,va,so,imm) in list(loads)+list(f4):
            A(f'buffer_load_dwordx4 v[{d}:{d+3}], v{va}, {WS}, {so} offen offset:{imm} sc1')
        if masked:
            A('s_mov_b32 exec_hi, 0')
            for (d,va,so,imm) in masked:
                A(f'buffer_load_dwordx4 v[{d}:{d+3}], v{va}, {WS}, {so} offen offset:{imm} sc1')
            A('s_mov_b32 exec_hi, -1')
        A('s_waitcnt vmcnt(0)')
        first=True
        for (d,va,so,imm) in list(loads)+list(masked):
            if first: A(f'v_xor_b32 v{tmp}, s{sT}, v{d+3}'); first=False
            else:
                A(f'v_xor_b32 v{tmp+1}, s{sT}, v{d+3}\nv_or_b32 v{tmp}, v{tmp}, v{tmp+1}')
        for (d,va,so,imm) in f4:
            A(f'v_perm_b32 v{tmp+1}, v{d+1}, v{d}, s{s.sF4a}\nv_perm_b32 v{tmp+2}, v{d+3}, v{d+2}, s{s.sF4b}')
            A(f'v_or_b32 v{tmp+1}, v{tmp+1}, v{tmp+2}')
            if first: A(f'v_xor_b32 v{tmp}, s{sT}, v{tmp+1}'); first=False
            else: A(f'v_xor_b32 v{tmp+1}, s{sT}, v{tmp+1}\nv_or_b32 v{tmp}, v{tmp}, v{tmp+1}')
        A(f'v_cmp_ne_u32 vcc, 0, v{tmp}')
        A(f's_cbranch_vccz {dn}')
        A(f's_sub_u32 s{sCNT}, s{sCNT}, 1\ns_cbranch_scc0 {lp}\ns_mov_b32 s{sCNT}, 0')
        A(f'{dn}:')
    def setflag(s, word, vaddr_tmp, vone, swave=None, val='1'):
        A=s.A
        if swave is None:
            A(f'v_mov_b32 v{vaddr_tmp}, {L_F+4*word}')
        else:
            A(f's_lshl_b32 s8, s{swave}, 2\ns_add_u32 s8, s8, {L_F+4*word}\nv_mov_b32 v{vaddr_tmp}, s8')
        A(f'v_mov_b32 v{vone}, {val}')
        A(f's_mov_b64 s[10:11], exec\ns_mov_b64 exec, 1')
        A(f'ds_write_b32 v{vaddr_tmp}, v{vone}')
        A(f's_mov_b64 exec, s[10:11]')
    def waitflags4(s, word, vt, extra=None):
        A=s.A; lp=A.label('lw'); dn=A.label('lwd')
        A(f'v_mov_b32 v{vt+4}, {L_F+4*word}')
        A(f'{lp}:')
        A(f'ds_read_b128 v[{vt}:{vt+3}], v{vt+4}')
        for e in (extra or []): A(e)
        A('s_waitcnt lgkmcnt(0)')
        A(f'v_min3_u32 v{vt}, v{vt}, v{vt+1}, v{vt+2}\nv_min_u32 v{vt}, v{vt}, v{vt+3}')
        A(f'v_cmp_ne_u32 vcc, 0, v{vt}')
        A(f's_cbranch_vccnz {dn}')
        A(f's_sub_u32 s{sCNT}, s{sCNT}, 1\ns_cbranch_scc0 {lp}\ns_mov_b32 s{sCNT}, 0')
        A(f'{dn}:')
    def waitflag1(s, word, vt):
        A=s.A; lp=A.label('lw'); dn=A.label('lwd')
        A(f'v_mov_b32 v{vt+1}, {L_F+4*word}')
        A(f'{lp}:')
        A(f'ds_read_b32 v{vt}, v{vt+1}')
        A('s_waitcnt lgkmcnt(0)')
        A(f'v_cmp_ne_u32 vcc, 0, v{vt}')
        A(f's_cbranch_vccnz {dn}')
        A(f's_sub_u32 s{sCNT}, s{sCNT}, 1\ns_cbranch_scc0 {lp}\ns_mov_b32 s{sCNT}, 0')
        A(f'{dn}:')
    def fast_from_flag(s, vt):
        s.A(f'v_readfirstlane_b32 s{sFast}, v{vt}\ns_lshr_b32 s{sFast}, s{sFast}, 1')
    def gstore(s, text):
        A=s.A
        if not s.o['fast']:
            A(text+' sc1'); return
        l1=A.label('slow'); l2=A.label('sd')
        A(f's_cmp_eq_u32 s{sFast}, 0\ns_cbranch_scc1 {l1}')
        A(text); A(f's_branch {l2}\n{l1}:'); A(text+' sc1'); A(f'{l2}:')
    def unpack2(s, src, lo, hi):
        s.A(f'v_lshlrev_b32 v{lo}, 16, v{src}\nv_and_b32 v{hi}, s{sHiMask}, v{src}')
    def round4(s, v, t):
        A=s.A
        A(f'v_cvt_pk_bf16_f32 v{t}, v{v}, v{v+1}\nv_cvt_pk_bf16_f32 v{t+1}, v{v+2}, v{v+3}')
        s.unpack2(t, v, v+1); s.unpack2(t+1, v+2, v+3)
    def round1(s, v, t):
        A=s.A
        A(f'v_cvt_pk_bf16_f32 v{t}, v{v}, v{v}\nv_lshlrev_b32 v{v}, 16, v{t}')
    def transpose(s, raw, dst):
        A=s.A
        for jj in range(4):
            for pp in range(4):
                a=raw+(2*pp)*4+jj; b=raw+(2*pp+1)*4+jj
                A(f'v_perm_b32 v{dst+(2*jj)*4+pp}, v{b}, v{a}, s{sSelLo}')
                A(f'v_perm_b32 v{dst+(2*jj+1)*4+pp}, v{b}, v{a}, s{sSelHi}')
    def rowsum16(s, regs, op='v_add_f32'):
        A=s.A
        for sh in (8,4,2,1):
            for r in regs:
                A(f'{op}_dpp v{r}, v{r}, v{r} row_ror:{sh} row_mask:0xf bank_mask:0xf')
    def swap16(s, regs, tmps, op='v_add_f32'):
        A=s.A
        for r,t in zip(regs,tmps): A(f'v_mov_b32 v{t}, v{r}')
        for r,t in zip(regs,tmps): A(f'v_permlane16_swap_b32 v{r}, v{t}')
        for r,t in zip(regs,tmps): A(f'{op} v{r}, v{r}, v{t}')
    def swap32(s, regs, tmps, op='v_add_f32'):
        A=s.A
        for r,t in zip(regs,tmps): A(f'v_mov_b32 v{t}, v{r}')
        for r,t in zip(regs,tmps): A(f'v_permlane32_swap_b32 v{r}, v{t}')
        for r,t in zip(regs,tmps): A(f'{op} v{r}, v{r}, v{t}')
    def mm(s, actaddr, nblk, T, act, acc, R):
        A=s.A
        for blk in range(nblk):
            A(f'ds_read_b128 v[{act+4*blk}:{act+4*blk+3}], v{actaddr} offset:{128*blk}')
        for blk in range(nblk):
            A(f's_waitcnt lgkmcnt({nblk-1-blk})')
            for j in range(8):
                c = '0' if blk==0 else f'v[{acc+4*j}:{acc+4*j+3}]'
                A(f'v_mfma_f32_16x16x32_bf16 v[{acc+4*j}:{acc+4*j+3}], v[{act+4*blk}:{act+4*blk+3}], v[{T+32*blk+4*j}:{T+32*blk+4*j+3}], {c}')
        if R is None: return
        for j in range(8):
            for b in range(2):
                A(f'v_add_f32_dpp v{R+8*b+j}, v{acc+4*j+2+b}, v{acc+4*j+b} row_shl:8 row_mask:0xf bank_mask:0xf')
    def part_write(s, R, vaddr):
        A=s.A
        A('s_mov_b64 exec, 0xff')
        A(f'ds_write_b128 v{vaddr}, v[{R}:{R+3}]\nds_write_b128 v{vaddr}, v[{R+4}:{R+7}] offset:16')
        A(f'ds_write_b128 v{vaddr}, v[{R+8}:{R+11}] offset:256\nds_write_b128 v{vaddr}, v[{R+12}:{R+15}] offset:272')
        A('s_mov_b64 exec, -1')
    def publishR(s, reg, G, vaddr, soff, mask):
        A=s.A
        idx=[(0,0),(0,2),(0,4),(0,6),(1,0),(1,2),(1,4),(1,6)]
        slots=[G+0,G+1,G+2,G+4,G+5,G+6,G+8,G+9]
        A(f'v_mov_b32 v{G+10}, 0')
        A(f'v_mov_b32 v{G+3}, s{sT}\nv_mov_b32 v{G+7}, s{sT}\nv_mov_b32 v{G+11}, s{sT}')
        for (b,j),d in zip(idx,slots):
            A(f'v_cvt_pk_bf16_f32 v{d}, v{reg(b,j)}, v{reg(b,j+1)}')
        A(f's_mov_b64 exec, {mask}')
        for k in range(3):
            A(f'buffer_store_dwordx4 v[{G+4*k}:{G+4*k+3}], v{vaddr}, {WS}, {soff} offen offset:{16*k} sc1')
        A('s_mov_b64 exec, -1')
    def get_tag(s):
        s.A(f's_waitcnt lgkmcnt(0)\ns_mul_i32 s{sT}, s{sE}, 1664525\ns_add_u32 s{sT}, s{sT}, 1013904223')

    def prologue(s):
        A=s.A
        A('s_cmp_ge_u32 s2, 256\ns_cbranch_scc1 L_exit')
        if s.o['pad'] or s.o['xdiag'] or s.o['enc']>=0: A('s_memrealtime s[94:95]')
        A('s_load_dwordx16 s[16:31], s[0:1], 0\ns_load_dwordx8 s[32:39], s[0:1], 64\ns_load_dwordx4 s[40:43], s[0:1], 96')
        A(f'v_lshrrev_b32 v1, 6, v0\nv_and_b32 v0, 63, v0\nv_readfirstlane_b32 s{sW}, v1')
        A(f's_and_b32 s{sG}, s2, 7\ns_lshr_b32 s{sI}, s2, 3')
        if s.o['pf']:
            A(f's_cmp_lg_u32 s{sW}, 7\ns_cbranch_scc1 L_nopf\ns_cmp_lt_u32 s{sI}, {s.o["pf_i"]}\ns_cbranch_scc1 L_nopf')
            A(f's_getpc_b64 s[92:93]\nL_pc:\ns_sub_u32 s92, s92, L_pc-{NAME}_kernel\ns_subb_u32 s93, s93, 0')
            A('v_lshlrev_b32 v7, 7, v0')
            for k in range((s.o['pf_kb']+7)//8):
                if k: A('v_add_u32 v7, 0x2000, v7')
                A(f'v_min_u32 v4, L_exit-{NAME}_kernel, v7\nv_mov_b32 v5, s93\nv_add_co_u32 v4, vcc, s92, v4\nv_addc_co_u32 v5, vcc, 0, v5, vcc')
                A(f'global_load_dword v{240+k}, v[4:5], off')
            A('L_nopf:')
        A(f's_cmp_lg_u32 s{sW}, 0\ns_cbranch_scc1 L_nz')
        A(f'v_lshlrev_b32 v8, 2, v0\nv_mov_b32 v9, 0\nds_write_b32 v8, v9 offset:{L_F}')
        A('L_nz:')
        A(f's_mov_b32 s{sSelLo}, 0x05040100\ns_mov_b32 s{sSelHi}, 0x07060302\ns_mov_b32 s{sHiMask}, 0xffff0000\ns_mov_b32 s{sCNT}, 200000\ns_mov_b32 s{sLog2e}, {LOG2E}')
        A(f's_getreg_b32 s{sXCC}, hwreg(HW_REG_XCC_ID, 0, 4)')
        if s.o['xdiag']:
            A(f's_cmp_eq_u32 s{sXCC}, s{sG}\ns_cbranch_scc1 L_xd2\ns_waitcnt lgkmcnt(0)\nL_xd1:\ns_memrealtime s[96:97]\ns_waitcnt lgkmcnt(0)\ns_sub_u32 s96, s96, s94\ns_cmp_lt_u32 s96, {s.o["xdiag"]}\ns_cbranch_scc1 L_xd1\nL_xd2:')
        A(f's_cmp_ge_u32 s{sW}, 4\ns_cbranch_scc1 L_tile')

    def endpgm(s):
        A=s.A
        if s.o['pad']:
            l=A.label('pad')
            A(f'{l}:\ns_memrealtime s[96:97]\ns_waitcnt lgkmcnt(0)\ns_sub_u32 s96, s96, s94\ns_cmp_lt_u32 s96, {s.o["pad"]}\ns_cbranch_scc1 {l}')
        A('s_endpgm')

    def post_kernarg(s):
        A=s.A
        A('s_waitcnt lgkmcnt(0)\ns_barrier')
        A(f's_load_dword s{sE}, s[{pWS}:{pWS+1}], 0')
        s.srd(44,pWS,WS_SIZE)

    def kv(s):
        A=s.A; o=s.o
        vK=1; vV=2; vQa=3; vKO=4; vST=31; Q=32; D=48; KR=64; VR=144; SP=224; ACC=64; S=8; S2=24; P=16; P2=24; vFa=28; vF=29
        NT=[int(x) for x in str(o['nt']).split(',')]; assert sum(a*b for a,b in zip(NT,RCNT))==64, NT
        if s.prof: A(f'v_mov_b32 v{vST}, 0')
        s.stamp(0,vST)
        A(f's_and_b32 s64, s{sI}, 1\ns_lshr_b32 s65, s{sI}, 1')
        A(f's_lshl_b32 s66, s64, 3\ns_add_u32 s66, s66, s{sG}\ns_lshl_b32 s66, s66, 23\ns_add_u32 s66, s66, {7<<20}')
        A(f's_lshr_b32 s67, s{sI}, 2\ns_add_u32 s67, s67, s{sI}\ns_add_u32 s67, s67, s{sG}\ns_and_b32 s67, s67, 3')
        A(f's_lshl_b32 s8, s{sW}, 12\ns_add_u32 s66, s66, s8')
        A(f'v_and_b32 v5, 3, v0\nv_lshlrev_b32 v5, 10, v5\nv_bfe_u32 v6, v0, 2, 2\nv_lshlrev_b32 v6, 8, v6\nv_lshrrev_b32 v7, 4, v0\nv_lshlrev_b32 v7, 4, v7\nv_add3_u32 v{vK}, v5, v6, v7')
        A(f'v_lshlrev_b32 v{vV}, 4, v0')
        A(f'v_mov_b32 v{vFa}, {L_F+4*F_Q}')
        ubs=[I_MF,I_BB,I_WQ,I_WO,I_MR]
        for r,ub in zip(ROLES,ubs): A(f's_cmp_lt_u32 s{sI}, {ub}\ns_cbranch_scc1 L_kv_{r}')
        def xt_publish():
            s.get_tag()
            l=A.label('nxt')
            A(f's_cmp_lg_u32 s{sW}, 3\ns_cbranch_scc1 {l}')
            A(f's_lshl_b32 s8, s{sG}, 9\ns_lshl_b32 s9, s{sI}, 4\ns_add_u32 s8, s8, s9\ns_add_u32 s8, s8, {hex(WS_XT)}')
            A(f'v_mov_b32 v8, s{sXCC}\nv_mov_b32 v9, 0\nv_mov_b32 v10, 0\nv_mov_b32 v11, s{sT}\nv_mov_b32 v12, 0')
            A(f's_mov_b64 exec, 1\nbuffer_store_dwordx4 v[8:11], v12, {WS}, s8 offen sc1\ns_mov_b64 exec, -1')
            A(f'{l}:')
        def role_issue(ri):
            r=ROLES[ri]; nt=NT[ri]; N=8*nt
            pre=sum(a*b for a,b in zip(NT[:ri],RCNT[:ri])); s0=sum(RCNT[:ri])
            A(f'L_kv_{r}:')
            A(f's_sub_u32 s8, s65, {s0}\ns_mul_i32 s8, s8, {nt*16384}\ns_add_u32 s66, s66, s8\ns_add_u32 s66, s66, {pre*16384}')
            if nt<4:
                for _ in range((3//nt)):
                    A(f's_sub_u32 s8, s67, {nt}\ns_cmp_ge_u32 s67, {nt}\ns_cselect_b32 s67, s8, s67')
            for t in range(nt):
                A(f's_add_u32 s68, s67, {t}\ns_sub_u32 s8, s68, {nt}\ns_cmp_ge_u32 s68, {nt}\ns_cselect_b32 s68, s8, s68\ns_lshl_b32 s68, s68, 14\ns_add_u32 s{70+t}, s66, s68')
            s.post_kernarg()
            if o['probe']!='none':
                if o['probe'] in ('V','K'):
                    s.srd(56,pV if o['probe']=='V' else pK,0x8000000)
                    A(f's_lshr_b32 s8, s2, 4\ns_lshl_b32 s8, s8, 23\ns_and_b32 s9, s2, 15\ns_lshl_b32 s9, s9, 18\ns_add_u32 s8, s8, s9')
                else:
                    off={'wsl':64<<20,'wsh':440<<20}[o['probe']]
                    A(f's_add_u32 s56, s{pWS}, {off}\ns_addc_u32 s57, s{pWS+1}, 0\ns_mov_b32 s58, 0x4000000\ns_mov_b32 s59, 0x20000')
                    A(f's_lshl_b32 s8, s2, 18')
                A(f's_lshl_b32 s9, s{sW}, 16\ns_add_u32 s8, s8, s9')
                for n in range(64):
                    A(f'buffer_load_dwordx4 v[{64+4*(n%32)}:{67+4*(n%32)}], v{vV}, {SC}, s8 offen nt\ns_add_u32 s8, s8, 1024')
                    if n>=16: A('s_waitcnt vmcnt(16)')
                A('s_waitcnt vmcnt(0)')
            s.srd(48,pK,0x8000000); s.srd(52,pV,0x8000000)
            thr={'MF':o['thr_mf'],'BB':o['thr_bb'],'WQ':o['thr_wq'],'WO':o['thr_wo'],'MR':o['thr_mr'],'FFN':o['thr']}[r]
            thr0,n0=(o['thr0'],o['n0']) if r not in ('MF','WQ') else (0,0)
            gates={}
            if r=='MF':
                gates={0:['G']}
                if o['g2_mf']!='none': gates.setdefault(min(o['pre_mf'],N-1),[]).append(o['g2_mf'])
            if r=='WQ':
                if o['gate_wq']!='none': gates={0:['G']}
                if o['g2_wq']!='none': gates.setdefault(min(o['pre_wq'],N-1),[]).append(o['g2_wq'])
            seq=[('K',t,kk) for t in range(nt) for kk in range(4)]+[('V',t,x) for t in range(nt) for x in range(4)]
            need_flags={'WO':[o['gate_wo']],'MR':[o['gate_mr']],'FFN':[o['gate_ffn']]}.get(r,[])
            nK=4*nt-1; nK2=8*nt-1
            lastgate=max([g for g in gates if gates[g]] or [0])
            def load(n):
                kind,t,x=seq[n]
                if kind=='K': A(f'buffer_load_dwordx4 v[{KR+16*t+4*x}:{KR+16*t+4*x+3}], v{vK}, {SA}, s{70+t} offen offset:{64*x} nt')
                else: A(f'buffer_load_dwordx4 v[{VR+16*t+4*x}:{VR+16*t+4*x+3}], v{vV}, {SB}, s{70+t} offen offset:{1024*x} nt')
            def post(n, st):
                if n==4*nt-1 and st: s.stamp(1,vST)
                if n==nK and 'K' in need_flags: s.setflag(F_K, 5, 6, swave=sW)
                if n==nK2 and 'K2' in need_flags: s.setflag(F_K2, 5, 6, swave=sW)
            done_xt=False; ffs=set(); qknown=False
            for n in range(N):
                th=thr0 if n<n0 else thr
                for gk in gates.get(n,[]):
                    if (n>0 or gk=='G') and not done_xt: xt_publish(); done_xt=True
                    if gk=='G': s.waitflags4(F_G,8)
                    elif gk=='Q': s.waitflag1(F_Q,8); qknown=True
                    elif gk=='P': s.waitflag1(F_P,8)
                waits = (not qknown or not o['ff']) and th and n+1>th and n<N-1 and n>=lastgate
                chk = waits and o['ff'] and done_xt
                if chk: A(f'ds_read_b32 v{vF}, v{vFa}')
                load(n)
                f1=min(thr0 if n0 else thr, 4) if (thr0 if n0 else thr) else 4
                if not done_xt and n+1>=min(f1,N): xt_publish(); done_xt=True
                post(n,True)
                if waits:
                    if chk:
                        A(f's_waitcnt vmcnt({th}) lgkmcnt(0)\nv_cmp_ne_u32 vcc, 0, v{vF}\ns_cbranch_vccnz L_ff_{r}_{n+1}'); ffs.add(n+1)
                    else: A(f's_waitcnt vmcnt({th})')
            A(f's_branch L_kvq_{nt}' if qknown else f's_branch L_kvj_{nt}')
            if ffs:
                for n in range(min(ffs),N):
                    if n in ffs: A(f'L_ff_{r}_{n}:')
                    load(n); post(n,False)
                A(f's_branch L_kvq_{nt}')
        for ri in (5,0,1,2,3,4): role_issue(ri)
        def tr_pp(raw,dst,pp):
            for jj in range(4):
                a=raw+(2*pp)*4+jj; b=raw+(2*pp+1)*4+jj
                A(f'v_perm_b32 v{dst+(2*jj)*4+pp}, v{b}, v{a}, s{sSelLo}')
                A(f'v_perm_b32 v{dst+(2*jj+1)*4+pp}, v{b}, v{a}, s{sSelHi}')
        def tr_odd_pp(raw,dst,pp):
            for jj in range(4):
                a=raw+(2*pp)*4+jj; b=raw+(2*pp+1)*4+jj
                A(f'v_perm_b32 v{dst+(2*jj)*2+pp}, v{b}, v{a}, s{sSelLo}')
                A(f'v_perm_b32 v{dst+(2*jj+1)*2+pp}, v{b}, v{a}, s{sSelHi}')
        def compute(nt):
            npair=nt//2; odd=nt&1; NV=4*nt
            vt=[SP if p==0 else VR+32*(p-1) for p in range(npair)]
            vto=SP if npair==0 else VR+32*(npair-1)
            def transposes(p,wait=True):
                for pp in range(4):
                    if wait: A(f's_waitcnt vmcnt({NV-8*p-2*pp-2})')
                    tr_pp(VR+32*p,vt[p],pp)
            def tr_odd(wait=True):
                for pp in range(2):
                    if wait: A(f's_waitcnt vmcnt({2-2*pp})')
                    tr_odd_pp(VR+32*npair,vto,pp)
            def mf_pair(p):
                for j in range(8):
                    c='0' if p==0 else f'v[{ACC+4*j}:{ACC+4*j+3}]'
                    A(f'v_mfma_f32_16x16x32_bf16 v[{ACC+4*j}:{ACC+4*j+3}], v[{vt[p]+4*j}:{vt[p]+4*j+3}], v[{P+4*p}:{P+4*p+3}], {c}')
            def mf_odd():
                pr=P2 if nt==5 else P+2*(nt-1)
                for j in range(8):
                    c='0' if npair==0 else f'v[{ACC+4*j}:{ACC+4*j+3}]'
                    A(f'v_mfma_f32_16x16x16_bf16 v[{ACC+4*j}:{ACC+4*j+3}], v[{vto+2*j}:{vto+2*j+1}], v[{pr}:{pr+1}], {c}')
            def consts():
                A(f'v_lshrrev_b32 v7, 4, v0\nv_lshlrev_b32 v7, 4, v7')
                A(f'v_and_b32 v5, 3, v0\nv_lshlrev_b32 v5, 8, v5\nv_add_u32 v{vQa}, v5, v7')
                A(f'v_and_b32 v5, 15, v0\nv_mul_u32_u24 v5, 576, v5\ns_mul_i32 s8, s{sW}, 2304\ns_add_u32 s8, s8, {L_KO}\nv_add3_u32 v{vKO}, v5, v7, s8')
                A(f'v_and_b32 v14, 3, v0\nv_lshlrev_b32 v14, 4, v14\ns_lshl_b32 s8, s{sW}, 2\nv_add_u32 v15, s8, v14')
                A('s_mov_b32 s10, 0x00f000f0\ns_mov_b32 s11, 0x00f000f0\ns_mov_b32 s12, 0x0f000f00\ns_mov_b32 s13, 0x0f000f00\ns_mov_b32 s14, 0xf000f000\ns_mov_b32 s15, 0xf000f000')
                A(f's_lshl_b32 s8, s{sG}, 2\ns_add_u32 s8, s8, s{sW}\ns_lshl_b32 s8, s8, 1\ns_add_u32 s8, s8, s64\ns_lshl_b32 s8, s8, 4\ns_add_u32 s8, s8, s65\ns_mul_i32 s76, s8, 576\ns_add_u32 s76, s76, {hex(WS_AS)}')
            A(f'L_kvj_{nt}:')
            s.stamp(2,vST)
            consts()
            A(f'ds_read_b32 v{vF}, v{vFa}\ns_waitcnt lgkmcnt(0)\nv_cmp_ne_u32 vcc, 0, v{vF}\ns_mov_b32 s77, 0\ns_cbranch_vccnz L_kvq2_{nt}')
            for p in range(npair): transposes(p)
            if odd: tr_odd()
            A('s_mov_b32 s77, 1')
            s.waitflag1(F_Q, 8)
            A(f's_branch L_kvq2_{nt}')
            A(f'L_kvq_{nt}:')
            s.stamp(2,vST)
            consts()
            A('s_mov_b32 s77, 0')
            A(f'L_kvq2_{nt}:')
            A(f'ds_read_b32 v8, v{vFa}')
            for kk in range(4):
                A(f'ds_read_b128 v[{Q+4*kk}:{Q+4*kk+3}], v{vQa} offset:{L_Q+64*kk}')
            A('s_waitcnt lgkmcnt(4)')
            s.fast_from_flag(8)
            s.stamp(3,vST)
            A(f's_waitcnt vmcnt({NV})')
            Dr=lambda t: (D+4*t if t<4 else S2)
            for kk in range(4):
                A(f's_waitcnt lgkmcnt({3-kk})')
                for t in range(nt):
                    c='0' if kk==0 else f'v[{Dr(t)}:{Dr(t)+3}]'
                    A(f'v_mfma_f32_16x16x32_bf16 v[{Dr(t)}:{Dr(t)+3}], v[{KR+16*t+4*kk}:{KR+16*t+4*kk+3}], v[{Q+4*kk}:{Q+4*kk+3}], {c}')
            nm=min(nt,4)
            msk=['','s[10:11]','s[12:13]','s[14:15]']
            if nm==1:
                for r in range(4): A(f'v_mov_b32 v{S+r}, v{D+r}')
            for t in range(1,nm):
                for r in range(4):
                    A(f'v_cndmask_b32 v{S+r}, v{(D if t==1 else S)+r}, v{D+4*t+r}, {msk[t]}')
            if nm<4:
                A('v_mov_b32 v12, 0xff800000')
                for t in range(nm,4):
                    for r in range(4): A(f'v_cndmask_b32 v{S+r}, v{S+r}, v12, {msk[t]}')
            s.round4(S,12)
            if nt==5: s.round4(S2,12)
            A('s_mov_b32 s8, 0x3db504f3')
            for r in range(4): A(f'v_mul_f32 v{S+r}, s8, v{S+r}')
            if nt==5:
                for r in range(4): A(f'v_mul_f32 v{S2+r}, s8, v{S2+r}')
            s.round4(S,12)
            if nt==5: s.round4(S2,12)
            A(f'v_max3_f32 v12, v{S}, v{S+1}, v{S+2}\nv_max_f32 v12, v12, v{S+3}')
            if nt==5: A(f'v_max3_f32 v12, v12, v{S2}, v{S2+1}\nv_max3_f32 v12, v12, v{S2+2}, v{S2+3}')
            A('v_max_f32_dpp v12, v12, v12 row_ror:4 row_mask:0xf bank_mask:0xf\nv_max_f32_dpp v12, v12, v12 row_ror:8 row_mask:0xf bank_mask:0xf')
            s.swap16([12],[13],'v_max_f32'); s.swap32([12],[13],'v_max_f32')
            A('s_mov_b64 exec, 0xf')
            A(f'ds_write_b32 v15, v12 offset:{L_KM}')
            A('s_mov_b64 exec, -1')
            s.setflag(F_M, 16, 17, swave=sW)
            s.waitflags4(F_M, 48, extra=[f'ds_read_b128 v[56:59], v14 offset:{L_KM}'])
            A('v_max3_f32 v12, v56, v57, v58\nv_max_f32 v12, v12, v59')
            s.stamp(4,vST)
            regs=[S+r for r in range(4)]+([S2+r for r in range(4)] if nt==5 else [])
            for r in regs: A(f'v_sub_f32 v{r}, v{r}, v12')
            for r in regs: A(f'v_mul_f32 v{r}, s{sLog2e}, v{r}')
            for r in regs: A(f'v_exp_f32 v{r}, v{r}')
            A(f'v_cvt_pk_bf16_f32 v{P}, v{S}, v{S+1}\nv_cvt_pk_bf16_f32 v{P+1}, v{S+2}, v{S+3}')
            A(f'v_add_f32 v13, v{S}, v{S+1}\nv_add_f32 v30, v{S+2}, v{S+3}\nv_add_f32 v13, v13, v30')
            if nt==5:
                A(f'v_add_f32 v30, v{S2}, v{S2+1}\nv_add_f32 v5, v{S2+2}, v{S2+3}\nv_add_f32 v30, v30, v5')
                A(f'v_cvt_pk_bf16_f32 v{P2}, v{S2}, v{S2+1}\nv_cvt_pk_bf16_f32 v{P2+1}, v{S2+2}, v{S2+3}')
                A('s_mov_b32 s10, 0x000f000f\ns_mov_b32 s11, 0x000f000f\nv_cndmask_b32 v30, 0, v30, s[10:11]\nv_add_f32 v13, v13, v30')
            for t in range(1,nm):
                A(f'v_mov_b32_dpp v{P+2*t}, v{P} row_shl:{4*t} row_mask:0xf bank_mask:0xf bound_ctrl:0')
                A(f'v_mov_b32_dpp v{P+2*t+1}, v{P+1} row_shl:{4*t} row_mask:0xf bank_mask:0xf bound_ctrl:0')
            def lsum():
                A('v_add_f32_dpp v13, v13, v13 row_ror:4 row_mask:0xf bank_mask:0xf\nv_add_f32_dpp v13, v13, v13 row_ror:8 row_mask:0xf bank_mask:0xf')
                s.swap16([13],[30]); s.swap32([13],[30])
                A('s_mov_b64 exec, 0xf')
                A(f'ds_write_b32 v15, v13 offset:{L_KL}')
                A('s_mov_b64 exec, -1')
            A(f's_cmp_eq_u32 s77, 1\ns_cbranch_scc1 L_kvpv_{nt}')
            lsum()
            for p in range(npair):
                transposes(p);
                if p==npair-1 and not odd: s.stamp(5,vST)
                mf_pair(p)
            if odd:
                tr_odd(); s.stamp(5,vST); mf_odd()
            A(f's_branch L_kvf')
            A(f'L_kvpv_{nt}:')
            for p in range(npair): mf_pair(p)
            if odd: mf_odd()
            lsum()
            s.stamp(5,vST)
            A(f's_branch L_kvf')
        for nt in sorted(set(NT)): compute(nt)
        A('L_kvf:')
        A(f's_mul_i32 s8, s{sW}, 576\ns_add_u32 s8, s8, {L_KO}\nv_and_b32 v24, 31, v0\nv_lshlrev_b32 v24, 4, v24\nv_add_u32 v24, s8, v24')
        A(f's_lshl_b32 s9, s{sW}, 4\ns_add_u32 s9, s9, {L_KL}\nv_mov_b32 v25, s9')
        A(f'v_lshlrev_b32 v57, 4, v0')
        G=52
        A(f'v_mov_b32 v{G+2}, 0\nv_mov_b32 v{G+3}, s{sT}')
        A(f'v_readlane_b32 s78, v12, s{sW}')
        A(f'v_mov_b32 v56, s78')
        A(f'v_mov_b32 v16, {L_F+4*F_O}\ns_lshl_b32 s8, s{sW}, 2\nv_add_u32 v16, s8, v16\nv_mov_b32 v17, 1')
        A('s_mov_b32 s10, 0x000f000f\ns_mov_b32 s11, 0x000f000f\ns_mov_b64 exec, s[10:11]')
        for j in range(8):
            A(f'ds_write_b128 v{vKO}, v[{ACC+4*j}:{ACC+4*j+3}] offset:{64*j}')
        A('s_mov_b64 exec, 1')
        A('ds_write_b32 v16, v17')
        A('s_mov_b64 exec, -1')
        O=32
        ex=[f'ds_read_b128 v[{O+4*w}:{O+4*w+3}], v24 offset:{2304*w}' for w in range(4)]+[f'ds_read_b128 v[48:51], v25']
        s.waitflags4(F_O, 16, extra=ex)
        for r in range(4):
            A(f'v_add_f32 v{O+r}, v{O+r}, v{O+4+r}\nv_add_f32 v{O+8+r}, v{O+8+r}, v{O+12+r}')
        A('v_add_f32 v48, v48, v49\nv_add_f32 v50, v50, v51')
        for r in range(4):
            A(f'v_add_f32 v{O+r}, v{O+r}, v{O+8+r}')
        A('v_add_f32 v48, v48, v50')
        A(f'v_cvt_pk_bf16_f32 v{G}, v{O}, v{O+1}\nv_cvt_pk_bf16_f32 v{G+1}, v{O+2}, v{O+3}')
        A('s_mov_b32 s10, 0\ns_mov_b32 s11, 1')
        A(f'v_cndmask_b32 v{G}, v{G}, v56, s[10:11]\nv_cndmask_b32 v{G+1}, v{G+1}, v48, s[10:11]')
        A('s_mov_b32 s10, -1\ns_mov_b32 s11, 1\ns_mov_b64 exec, s[10:11]')
        s.gstore(f'buffer_store_dwordx4 v[{G}:{G+3}], v57, {WS}, s76 offen')
        s.stamp(6,vST)
        if o['enc']>=0:
            A(f's_cmp_lg_u32 s2, {o["enc"]}\ns_cbranch_scc1 L_encx\ns_cmp_lg_u32 s{sW}, 0\ns_cbranch_scc1 L_encx')
            A('s_lshl_b32 s98, s98, 2\ns_add_u32 s98, s98, 2000\nL_encl:\ns_memrealtime s[96:97]\ns_waitcnt lgkmcnt(0)\ns_sub_u32 s96, s96, s94\ns_cmp_lt_u32 s96, s98\ns_cbranch_scc1 L_encl\nL_encx:')
        s.stamp_flush(vST, 5)
        s.endpgm()

    def tile_consts(s):
        A=s.A
        A(f's_sub_u32 s{sTW}, s{sW}, 4')
        A(f's_mul_i32 s8, s{sTW}, 640\ns_add_u32 s8, s8, {L_ACT}')
        A(f'v_lshrrev_b32 v8, 5, v0\nv_and_b32 v9, 31, v0')
        A(f'v_mul_u32_u24 v10, {BSTR}, v8\nv_lshlrev_b32 v11, 3, v9\nv_add3_u32 v3, v10, v11, s8')
        A(f'v_and_b32 v10, 1, v0\nv_mul_u32_u24 v10, {BSTR}, v10\nv_bfe_u32 v11, v0, 1, 1\nv_lshlrev_b32 v11, 6, v11\nv_lshrrev_b32 v12, 4, v0\nv_lshlrev_b32 v12, 4, v12\nv_add3_u32 v7, v10, v11, v12')
        A(f'v_add_u32 v4, s8, v7')
        A(f'v_lshrrev_b32 v10, 4, v9\nv_lshlrev_b32 v10, 9, v10\nv_lshlrev_b32 v11, 8, v8\nv_and_b32 v12, 15, v0\nv_lshlrev_b32 v12, 4, v12\nv_add3_u32 v5, v10, v11, v12')
        A(f's_lshl_b32 s8, s{sTW}, 9\ns_add_u32 s8, s8, {L_PART}\nv_and_b32 v10, 7, v0\nv_lshlrev_b32 v10, 5, v10\nv_add_u32 v6, s8, v10')
    def wlane(s, dst, RS, cmask=7):
        A=s.A
        A(f'v_bfe_u32 v10, v0, 3, 1\nv_lshlrev_b32 v10, 5, v10\nv_lshrrev_b32 v11, 4, v0\nv_lshlrev_b32 v11, 3, v11\nv_add_u32 v10, v10, v11\nv_mul_u32_u24 v10, {RS}, v10\nv_and_b32 v11, {cmask}, v0\nv_lshlrev_b32 v11, 4, v11\nv_add_u32 v{dst}, v10, v11')
    def wloads(s, srd, vl, sbase, rowoffs, RS, raw, stmp=66, thr=0):
        A=s.A
        for n,ro in enumerate(rowoffs):
            if ro==0: so=f's{sbase}'
            else:
                A(f's_add_u32 s{stmp}, s{sbase}, {ro*RS}'); so=f's{stmp}'
            A(f'buffer_load_dwordx4 v[{raw+4*n}:{raw+4*n+3}], v{vl}, {srd}, {so} offen nt')
            if thr and n+1>thr and n+1<len(rowoffs): A(f's_waitcnt vmcnt({thr})')
    def xt_pre(s, d, va):
        return [f'buffer_load_dwordx4 v[{d}:{d+3}], v{va}, {WS}, s91 offen sc1']
    def xt_setup(s, va):
        s.A(f'v_and_b32 v{va}, 31, v0\nv_lshlrev_b32 v{va}, 4, v{va}\ns_lshl_b32 s91, s{sG}, 9\ns_add_u32 s91, s91, {hex(WS_XT)}')
    def xt_eval(s, d, t):
        A=s.A
        A(f'v_xor_b32 v{t}, s{sT}, v{d+3}\nv_xor_b32 v{t+1}, s{sXCC}, v{d}\nv_or_b32 v{t}, v{t}, v{t+1}\nv_cmp_ne_u32 vcc, 0, v{t}')
        A(f's_cmp_eq_u64 vcc, 0\ns_cselect_b32 s{sFast}, 1, 0')
    def ppoll(s, nset, setbase, setsize, loads, tmp, done):
        A=s.A; lp=A.label('pp'); fin=A.label('ppf')
        nl=len(loads)
        def issue(k):
            for (ro,va,so,imm) in loads:
                d=setbase+k*setsize+ro
                A(f'buffer_load_dwordx4 v[{d}:{d+3}], v{va}, {WS}, {so} offen offset:{imm} sc1')
        for k in range(nset): issue(k)
        labs=[A.label('ppd') for k in range(nset)]
        A(f'{lp}:')
        for k in range(nset):
            A(f's_waitcnt vmcnt({nl*(nset-1)})')
            first=True
            for (ro,va,so,imm) in loads:
                d=setbase+k*setsize+ro
                if first: A(f'v_xor_b32 v{tmp}, s{sT}, v{d+3}'); first=False
                else: A(f'v_xor_b32 v{tmp+1}, s{sT}, v{d+3}\nv_or_b32 v{tmp}, v{tmp}, v{tmp+1}')
            A(f'v_cmp_ne_u32 vcc, 0, v{tmp}')
            A(f's_cbranch_vccz {labs[k]}')
            issue(k)
        A(f's_sub_u32 s{sCNT}, s{sCNT}, 1\ns_cbranch_scc0 {lp}\ns_mov_b32 s{sCNT}, 0')
        for k in range(nset):
            A(f'{labs[k]}:')
            done(k)
            if k<nset-1: A(f's_branch {fin}')
        A(f'{fin}:')
    def qpoll(s, vST):
        A=s.A; dn=A.label('qd')
        A(f's_cmp_lg_u32 s{sTW}, 0\ns_cbranch_scc1 {dn}')
        A(f'v_lshrrev_b32 v8, 4, v0\nv_lshlrev_b32 v8, 9, v8\nv_and_b32 v9, 15, v0\nv_lshlrev_b32 v9, 4, v9\nv_add_u32 v8, v8, v9')
        A(f's_and_b32 s8, s{sI}, 1\ns_lshl_b32 s8, s8, 8\ns_lshl_b32 s66, s{sG}, 12\ns_add_u32 s66, s66, s8\ns_add_u32 s66, s66, {hex(WS_Q)}')
        A(f'v_lshlrev_b32 v9, 3, v0\nv_mov_b32 v10, {L_F+4*F_Q}')
        SB_=32
        def done(k):
            d=SB_+8*k
            A(f'ds_write_b64 v9, v[{d}:{d+1}] offset:{L_Q}\nds_write_b64 v9, v[{d+4}:{d+5}] offset:{L_Q+512}')
            A(f'v_or_b32 v11, v{d+2}, v{d+6}')
        s.ppoll(s.o['npipe_q'],SB_,8,[(0,8,'s66',0),(4,8,'s66',2048)],12,done)
        A('v_cmp_ne_u32 vcc, 0, v11\ns_cmp_lg_u64 vcc, 0\ns_cselect_b32 s9, 2, 1')
        A('v_mov_b32 v11, s9\ns_mov_b64 exec, 1\nds_write_b32 v10, v11\ns_mov_b64 exec, -1')
        s.stamp(4,vST)
        A(f'{dn}:')
    def final_sum(s, O):
        A=s.A
        for r in range(4):
            A(f'v_add_f32 v{O+r}, v{O+r}, v{O+4+r}\nv_add_f32 v{O+8+r}, v{O+8+r}, v{O+12+r}')
        for r in range(4):
            A(f'v_add_f32 v{O+r}, v{O+r}, v{O+8+r}')
    def final_tile(s, O, G):
        s.final_sum(O)
        s.A(f'v_cvt_pk_bf16_f32 v{G}, v{O}, v{O+1}\nv_cvt_pk_bf16_f32 v{G+1}, v{O+2}, v{O+3}')
    def part_read_list(s, O, va):
        return [f'ds_read_b128 v[{O+4*w}:{O+4*w+3}], v{va} offset:{512*w}' for w in range(4)]
    def ln_apply(s, X, sm, srs, t):
        A=s.A
        for r in range(4): A(f'v_sub_f32 v{X+r}, v{X+r}, v{sm}')
        s.round4(X,t)
        for r in range(4): A(f'v_mul_f32 v{X+r}, v{X+r}, v{srs}')
        s.round4(X,t)
    def mod_apply(s, X, C1, SH, t):
        A=s.A
        for r in range(4): A(f'v_mul_f32 v{X+r}, v{X+r}, v{C1+r}')
        s.round4(X,t)
        for r in range(4): A(f'v_add_f32 v{X+r}, v{X+r}, v{SH+r}')
        A(f'v_cvt_pk_bf16_f32 v{t}, v{X}, v{X+1}\nv_cvt_pk_bf16_f32 v{t+1}, v{X+2}, v{X+3}')
    def ln_final(s, mean, var, t):
        A=s.A
        s.round1(mean,t); s.round1(var,t)
        A(f'v_add_f32 v{var}, 0x3727c5ac, v{var}')
        s.round1(var,t)
        A(f'v_sqrt_f32 v{var}, v{var}')
        s.round1(var,t)
        A(f'v_rcp_f32 v{var}, v{var}')
    def silu4(s, X, t):
        A=s.A
        for r in range(4): A(f'v_mul_f32 v{t+r}, s{sLog2e}, v{X+r}')
        for r in range(4): A(f'v_exp_f32 v{t+r}, -v{t+r}')
        for r in range(4): A(f'v_add_f32 v{t+r}, 1.0, v{t+r}')
        for r in range(4): A(f'v_rcp_f32 v{t+r}, v{t+r}')
        for r in range(4): A(f'v_mul_f32 v{X+r}, v{X+r}, v{t+r}')
    def gate(s, g):
        if g=='K': s.waitflags4(F_K,8)
        elif g=='K2': s.waitflags4(F_K2,8)
        elif g=='O': s.waitflags4(F_O,8)

    def tile(s):
        A=s.A; o=s.o
        RAW=64; T=128; ACC=32; R=16
        vST=255
        A('L_tile:')
        if s.prof: A(f'v_mov_b32 v{vST}, 0')
        s.stamp(0,vST)
        s.tile_consts()
        s.post_kernarg()
        A(f's_cmp_lt_u32 s{sI}, {I_MF}\ns_cbranch_scc1 L_mf')
        A(f's_cmp_lt_u32 s{sI}, {I_BB}\ns_cbranch_scc1 L_bb')
        A(f's_cmp_lt_u32 s{sI}, {I_WQ}\ns_cbranch_scc1 L_wq')
        A(f's_cmp_lt_u32 s{sI}, {I_WO}\ns_cbranch_scc1 L_wo')
        A(f's_cmp_lt_u32 s{sI}, {I_MR}\ns_cbranch_scc1 L_mr')
        A(f's_cmp_lt_u32 s{sI}, {I_FFN}\ns_cbranch_scc1 L_ffn')
        s.get_tag()
        A('s_branch L_qpoll')
        A('L_bb:')
        s.get_tag()
        A(f's_cmp_eq_u32 s{sTW}, 0\ns_cbranch_scc1 L_qpoll\ns_branch L_tail')

        def modtile(mf):
            A('L_mf:' if mf else 'L_mr:')
            s.srd(56,pC,2048); s.srd(48,pWM,512*6144)
            if mf:
                A(f's_lshl_b32 s65, s{sG}, 1\ns_add_u32 s65, s65, s{sI}')
            else:
                A(f's_lshl_b32 s65, s{sG}, 2\ns_add_u32 s65, s65, s{sI}\ns_sub_u32 s65, s65, {I_WO-16}')
            A(f'v_lshrrev_b32 v8, 5, v0\nv_and_b32 v9, 31, v0\nv_lshlrev_b32 v10, 10, v8\nv_lshlrev_b32 v11, 3, v9\ns_lshl_b32 s8, s{sTW}, 8\nv_add3_u32 v12, v10, v11, s8')
            A(f'buffer_load_dwordx2 v[24:25], v12, {SC}, 0 offen')
            s.wlane(2,6144)
            A(f's_mul_i32 s67, s{sTW}, {128*6144}\ns_lshl_b32 s8, s65, 7\ns_add_u32 s67, s67, s8')
            rows=[64*blk+ii for blk in range(2) for ii in range(8)]
            if mf:
                s.wloads(SA,2,67,rows,6144,RAW,stmp=68)
                s.setflag(F_G,8,9,swave=sTW)
                s.get_tag()
            else:
                if o['gate_mr']!='start':
                    s.gate(o['gate_mr'])
                s.wloads(SA,2,67,rows,6144,RAW,stmp=68,thr=o['thr_w'])
                s.get_tag()
                s.qpoll(vST)
            A(f'v_and_b32 v200, 31, v0\nv_lshlrev_b32 v200, 4, v200\nv_add_u32 v201, {L_PART}, v200')
            A(f's_lshl_b32 s66, s65, 9\ns_add_u32 s66, s66, {hex(WS_MOD)}')
            A('s_waitcnt vmcnt(16)')
            s.unpack2(24,8,9); s.unpack2(25,10,11)
            s.silu4(8,16)
            A('v_cvt_pk_bf16_f32 v12, v8, v9\nv_cvt_pk_bf16_f32 v13, v10, v11')
            A('ds_write_b64 v3, v[12:13]')
            A('s_waitcnt vmcnt(8)')
            s.transpose(RAW,T)
            A('s_waitcnt vmcnt(0)')
            s.stamp(1,vST)
            s.transpose(RAW+32,T+32)
            A('s_waitcnt lgkmcnt(0)')
            s.mm(4,2,T,8,ACC,R)
            s.part_write(R,6)
            s.setflag(F_T1,8,9,swave=sTW)
            A(f's_cmp_lg_u32 s{sTW}, 0\ns_cbranch_scc1 L_tail')
            A(f'v_mov_b32 v18, 0\nv_mov_b32 v19, s{sT}')
            s.waitflags4(F_T1,8,extra=s.part_read_list(32,201))
            s.final_tile(32,16)
            A('s_mov_b32 exec_hi, 0')
            A(f'buffer_store_dwordx4 v[16:19], v200, {WS}, s66 offen sc1')
            A('s_mov_b32 exec_hi, -1')
            if mf and o['g2_mf']=='P': s.setflag(F_P,8,9)
            s.stamp(3,vST)
            A('s_branch L_qpoll' if mf else 's_branch L_tdone')
        modtile(True); modtile(False)

        A('L_wq:')
        s.srd(56,pX,2048); s.srd(48,pWQ,512*8192)
        A(f'v_lshrrev_b32 v8, 5, v0\nv_and_b32 v9, 31, v0\nv_lshlrev_b32 v10, 10, v8\nv_lshlrev_b32 v11, 3, v9\ns_lshl_b32 s8, s{sTW}, 8\nv_add3_u32 v12, v10, v11, s8\nv_lshlrev_b32 v11, 5, v9\nv_add_u32 v13, v10, v11')
        A(f'buffer_load_dwordx2 v[14:15], v12, {SC}, 0 offen\nbuffer_load_dwordx4 v[16:19], v13, {SC}, 0 offen\nbuffer_load_dwordx4 v[20:23], v13, {SC}, 0 offen offset:16')
        s.wlane(2,8192)
        A(f's_sub_u32 s69, s{sI}, {I_BB}')
        A(f's_mul_i32 s65, s{sTW}, {128*8192}\ns_lshl_b32 s8, s{sG}, 10\ns_lshl_b32 s9, s69, 7\ns_add_u32 s65, s65, s8\ns_add_u32 s65, s65, s9')
        s.wloads(SA,2,65,[64*blk+ii for blk in range(2) for ii in range(8)],8192,RAW)
        if o['gate_wq']=='issued': s.setflag(F_G,8,9,swave=sTW)
        A('s_waitcnt vmcnt(16)')
        for k in range(8): s.unpack2(16+k, 32+2*k, 33+2*k)
        A('v_add_f32 v48, v32, v33')
        for k in range(2,16): A(f'v_add_f32 v48, v48, v{32+k}')
        s.rowsum16([48]); s.swap16([48],[49])
        A('v_mul_f32 v48, 0x3b000000, v48')
        for k in range(16): A(f'v_sub_f32 v{32+k}, v{32+k}, v48')
        A('v_mul_f32 v50, v32, v32')
        for k in range(1,16): A(f'v_fmac_f32 v50, v{32+k}, v{32+k}')
        s.rowsum16([50]); s.swap16([50],[49])
        A('v_mul_f32 v50, 0x3b000000, v50')
        s.ln_final(48,50,49)
        s.unpack2(14,8,9); s.unpack2(15,10,11)
        s.ln_apply(8,48,50,12)
        A(f's_lshl_b32 s66, s{sTW}, 10\ns_add_u32 s66, s66, {hex(WS_MOD)}\ns_add_u32 s67, s66, {8*512}')
        s.xt_setup(203)
        A(f'v_and_b32 v200, 31, v0\nv_lshlrev_b32 v200, 4, v200\nv_add_u32 v201, {L_PART}, v200')
        A(f's_lshl_b32 s68, s{sG}, 12\ns_lshl_b32 s8, s69, 9\ns_add_u32 s68, s68, s8\ns_add_u32 s68, s68, {hex(WS_Q)}')
        s.get_tag()
        A('s_waitcnt vmcnt(8)')
        s.transpose(RAW,T)
        A('s_waitcnt vmcnt(0)')
        s.stamp(1,vST)
        if o['gate_wq']=='arrived': s.setflag(F_G,36,37,swave=sTW)
        s.transpose(RAW+32,T+32)
        s.poll([(20,5,'s66',0),(24,5,'s67',0)],12,pre=s.xt_pre(32,203))
        if o['gate_wq']=='mod': s.setflag(F_G,36,37,swave=sTW)
        if o['g2_wq']=='M': s.setflag(F_M2,36,37,swave=sTW)
        s.stamp(2,vST)
        s.unpack2(20,16,17); s.unpack2(21,18,19)
        s.unpack2(24,28,29); s.unpack2(25,30,31)
        for r in range(4): A(f'v_add_f32 v{28+r}, 1.0, v{28+r}')
        s.round4(28,12)
        s.mod_apply(8,28,16,12)
        A('ds_write_b64 v3, v[12:13]')
        s.xt_eval(32,14)
        A('s_waitcnt lgkmcnt(0)')
        s.mm(4,2,T,8,ACC,R)
        s.part_write(R,6)
        s.setflag(F_T1,8,9,swave=sTW)
        A(f's_cmp_lg_u32 s{sTW}, 0\ns_cbranch_scc1 L_tail')
        A(f'v_mov_b32 v18, s{sFast}\nv_mov_b32 v19, s{sT}')
        s.waitflags4(F_T1,8,extra=s.part_read_list(32,201))
        s.final_tile(32,16)
        A('s_mov_b32 exec_hi, 0')
        s.gstore(f'buffer_store_dwordx4 v[16:19], v200, {WS}, s68 offen')
        A('s_mov_b32 exec_hi, -1')
        if o['g2_wq']=='P': s.setflag(F_P,8,9)
        s.stamp(3,vST)
        A('s_branch L_qpoll')

        A('L_wo:')
        s.srd(48,pWO,4096*1024)
        A('v_bfe_u32 v10, v0, 4, 1\nv_lshlrev_b32 v10, 6, v10\nv_bfe_u32 v11, v0, 3, 1\nv_lshlrev_b32 v11, 1, v11\nv_lshrrev_b32 v12, 5, v0\nv_add3_u32 v10, v10, v11, v12\nv_lshlrev_b32 v10, 10, v10\nv_and_b32 v11, 7, v0\nv_lshlrev_b32 v11, 4, v11\nv_add_u32 v2, v10, v11')
        A(f's_sub_u32 s65, s{sI}, {I_WQ}\ns_lshr_b32 s65, s65, 1\ns_and_b32 s69, s{sI}, 1\ns_lshl_b32 s68, s{sG}, 2\ns_add_u32 s68, s68, s65')
        A(f's_lshl_b32 s67, s68, 17\ns_lshl_b32 s8, s69, 9\ns_add_u32 s67, s67, s8\ns_lshl_b32 s8, s{sTW}, 7\ns_add_u32 s67, s67, s8')
        if o['gate_wo']!='start':
            s.gate(o['gate_wo'])
        s.stamp(2,vST)
        s.wloads(SA,2,67,[32*(ii>>2)+8*(ii&3)+4*blk for blk in range(2) for ii in range(8)],1024,RAW,stmp=70,thr=o['thr_w'])
        s.get_tag()
        s.qpoll(vST)
        A('s_waitcnt vmcnt(8)')
        s.transpose(RAW,T)
        A('s_waitcnt vmcnt(0)')
        s.stamp(1,vST)
        s.transpose(RAW+32,T+32)
        A('s_branch L_wo2')

        A('L_ffn:')
        A(f's_mul_i32 s65, s{sG}, 7\ns_add_u32 s65, s65, s{sI}\ns_sub_u32 s65, s65, {I_MR}')
        s.srd(48,pW1,512*3584); s.srd(52,pW3,512*3584); s.srd(56,pW2,1792*1024)
        s.wlane(2,3584,cmask=3)
        A(f's_mul_i32 s67, s{sTW}, {128*3584}\ns_lshl_b32 s8, s65, 6\ns_add_u32 s67, s67, s8')
        A('v_lshrrev_b32 v10, 4, v0\nv_lshlrev_b32 v10, 13, v10\nv_and_b32 v11, 15, v0\nv_lshlrev_b32 v11, 4, v11\nv_add_u32 v1, v10, v11')
        A(f's_lshl_b32 s69, s65, 15\ns_lshl_b32 s8, s{sTW}, 8\ns_add_u32 s69, s69, s8')
        A('s_mov_b32 s72, 0x0f0f0f0f\ns_mov_b32 s73, 0x0f0f0f0f\ns_mov_b32 s74, 0xf0f0f0f0\ns_mov_b32 s75, 0xf0f0f0f0')
        s.get_tag()
        s.qpoll(vST)
        s.gate(o['gate_ffn'])
        s.stamp(2,vST)
        for blk in range(2):
            A('s_mov_b64 exec, s[72:73]')
            s.wloads(SA,2,67,[64*blk+ii for ii in range(8)],3584,RAW+32*blk,stmp=68)
            A('s_mov_b64 exec, s[74:75]')
            s.wloads(SB,2,67,[64*blk+ii for ii in range(8)],3584,RAW+32*blk,stmp=68)
        A('s_mov_b64 exec, -1')
        s.wloads(SC,1,69,list(range(8)),1024,192,stmp=68)
        A('s_waitcnt vmcnt(24)')
        s.transpose(RAW,T)
        A('s_waitcnt vmcnt(8)')
        s.transpose(RAW+32,T+32)
        A('s_waitcnt vmcnt(0)')
        s.stamp(1,vST)
        s.transpose(192,RAW)
        A('s_branch L_ffn2')

        A('L_qpoll:')
        s.qpoll(vST)
        A('s_branch L_tdone')
        A('L_tail:')
        A(f's_cmp_eq_u32 s{sTW}, 1\ns_cbranch_scc1 L_b1\ns_branch L_tdone')

        A('L_wo2:')
        A(f's_and_b32 s70, s{sTW}, 1\ns_lshr_b32 s71, s{sTW}, 1')
        A(f's_lshl_b32 s72, s68, 1\ns_add_u32 s72, s72, s70\ns_mul_i32 s72, s72, {16*576}\ns_add_u32 s72, s72, {hex(WS_AS)}')
        A(f's_lshl_b32 s8, s71, 8\ns_add_u32 s73, s72, s8\ns_add_u32 s74, s73, {2*2304}')
        A('v_lshrrev_b32 v8, 4, v0\nv_and_b32 v9, 15, v0\nv_mul_u32_u24 v10, 576, v8\nv_lshlrev_b32 v11, 4, v9\nv_add_u32 v12, v10, v11')
        A('v_and_b32 v11, 3, v0\nv_mul_u32_u24 v11, 2304, v11\nv_add3_u32 v13, v10, v11, 0\nv_add_u32 v13, 512, v13')
        A(f's_mul_i32 s8, s70, {BSTR}\ns_lshl_b32 s9, s71, 7\ns_add_u32 s8, s8, s9\ns_add_u32 s8, s8, {L_OACT}\nv_lshlrev_b32 v14, 3, v9\nv_add_u32 v14, s8, v14')
        A(f'v_add_u32 v15, {L_OACT}, v7')
        A(f'v_and_b32 v2, 7, v0\nv_mul_u32_u24 v2, 48, v2\ns_lshl_b32 s8, s69, 5\ns_lshl_b32 s9, s{sTW}, 3\ns_add_u32 s8, s8, s9\ns_mul_i32 s8, s8, 48\ns_mul_i32 s75, s68, 3072\ns_add_u32 s75, s75, s8\ns_add_u32 s75, s75, {hex(WS_AO)}')
        A('v_mov_b32 v56, v12')
        s.waitflags4(F_O,8)
        s.poll([(32,56,'s73',0),(36,56,'s73',2304),(40,56,'s74',0),(44,56,'s74',2304),(48,13,'s72',0)],8)
        s.stamp(5,vST)
        A('v_mov_b32 v50, v48')
        A('v_max_f32_dpp v50, v50, v50 quad_perm:[1,0,3,2] row_mask:0xf bank_mask:0xf\nv_max_f32_dpp v50, v50, v50 quad_perm:[2,3,0,1] row_mask:0xf bank_mask:0xf')
        s.swap16([50],[51],'v_max_f32'); s.swap32([50],[51],'v_max_f32')
        A(f'v_sub_f32 v48, v48, v50\nv_mul_f32 v48, s{sLog2e}, v48\nv_exp_f32 v48, v48')
        A('v_mul_f32 v49, v48, v49')
        A('v_add_f32_dpp v49, v49, v49 quad_perm:[1,0,3,2] row_mask:0xf bank_mask:0xf\nv_add_f32_dpp v49, v49, v49 quad_perm:[2,3,0,1] row_mask:0xf bank_mask:0xf')
        s.swap16([49],[51]); s.swap32([49],[51])
        A('v_rcp_f32 v49, v49\nv_mul_f32 v48, v48, v49')
        for q in range(4):
            s.unpack2(32+4*q, 16, 17); s.unpack2(33+4*q, 18, 19)
            for e in range(4):
                op='v_mul_f32_dpp' if q==0 else 'v_fmac_f32_dpp'
                A(f'{op} v{20+e}, v48, v{16+e} quad_perm:[{q},{q},{q},{q}] row_mask:0xf bank_mask:0xf')
        s.swap16([20,21,22,23],[16,17,18,19]); s.swap32([20,21,22,23],[16,17,18,19])
        A('v_cvt_pk_bf16_f32 v16, v20, v21\nv_cvt_pk_bf16_f32 v17, v22, v23')
        A('s_mov_b64 exec, 0xffff\nds_write_b64 v14, v[16:17]\ns_mov_b64 exec, -1')
        s.setflag(F_T2,8,9,swave=sTW)
        s.waitflags4(F_T2,8)
        s.mm(15,2,T,8,ACC,R)
        s.publishR(lambda b,j: R+8*b+j,32,2,'s75','0xff')
        s.stamp(6,vST)
        A('s_branch L_tdone')

        A('L_b1:')
        A(f's_sub_u32 s8, s{sI}, 8\ns_cmp_ge_u32 s{sI}, {I_WO}\ns_cselect_b32 s65, s8, s{sI}')
        s.srd(56,pX,2048); s.srd(60,pOUT,2048)
        A('v_and_b32 v8, 3, v0\nv_bfe_u32 v9, v0, 2, 2\nv_lshrrev_b32 v10, 4, v0\nv_lshrrev_b32 v11, 5, v0\nv_bfe_u32 v12, v0, 4, 1')
        A('v_lshlrev_b32 v13, 10, v11\nv_lshlrev_b32 v14, 4, v8\nv_lshlrev_b32 v15, 3, v12\nv_add3_u32 v13, v13, v14, v15\ns_lshl_b32 s8, s65, 6\nv_add_u32 v2, s8, v13')
        A(f'buffer_load_dwordx2 v[16:17], v2, {SC}, 0 offen')
        A('v_lshlrev_b32 v13, 8, v11\nv_lshlrev_b32 v14, 5, v8\nv_lshlrev_b32 v15, 4, v12\nv_add3_u32 v13, v13, v14, v15\ns_and_b32 s8, s65, 1\ns_lshl_b32 s8, s8, 7\nv_add_u32 v3, s8, v13')
        A(f's_lshr_b32 s8, s65, 1\ns_lshl_b32 s8, s8, 9\ns_add_u32 s66, s8, {hex(WS_MOD+16*512)}\ns_add_u32 s67, s66, {24*512}')
        A('v_lshlrev_b32 v13, 11, v11\nv_lshlrev_b32 v14, 5, v8\nv_lshlrev_b32 v15, 4, v12\nv_add3_u32 v13, v13, v14, v15\ns_lshl_b32 s8, s65, 7\nv_add_u32 v4, s8, v13')
        A(f's_lshl_b32 s68, s{sG}, 12\ns_add_u32 s68, s68, {hex(WS_X1)}')
        A('v_lshlrev_b32 v13, 8, v11\ns_lshl_b32 s8, s65, 4\nv_add_u32 v5, s8, v13')
        A(f's_lshl_b32 s69, s{sG}, 9\ns_add_u32 s69, s69, {hex(WS_XS)}')
        A('v_lshlrev_b32 v13, 2, v10\nv_add_u32 v13, v13, v9\nv_mul_u32_u24 v13, 3072, v13\nv_mul_u32_u24 v14, 48, v8\ns_mul_i32 s8, s65, 192\nv_add3_u32 v6, v13, v14, s8')
        A(f's_mov_b32 s70, {hex(WS_AO)}\ns_mov_b32 s71, {hex(WS_AO+16*3072)}')
        A(f's_mov_b32 s72, {hex(WS_YO)}\ns_mov_b32 s73, {hex(WS_YO+16*3072)}\ns_mov_b32 s74, {hex(WS_YO+32*3072)}\ns_mov_b32 s75, {hex(WS_YO+48*3072)}')
        SEL=64
        A('v_bfe_u32 v13, v0, 1, 3\nv_and_b32 v14, 1, v0\nv_mov_b32 v15, 0x3f80\nv_mov_b32 v7, 0x3f800000\nv_cmp_eq_u32 vcc, 1, v14\nv_cndmask_b32 v15, v15, v7, vcc')
        for kind in range(3):
            for pp in range(4):
                x=3*kind+pp
                d=SEL+4*kind+pp
                if pp==3 or x>7: A(f'v_mov_b32 v{d}, 0')
                else: A(f'v_cmp_eq_u32 vcc, {x}, v13\nv_cndmask_b32 v{d}, 0, v15, vcc')
        s.poll([(20,3,'s66',0),(24,3,'s67',0)],13)
        s.unpack2(16,28,29); s.unpack2(17,30,31)
        s.unpack2(20,32,33); s.unpack2(21,34,35)
        s.unpack2(24,36,37); s.unpack2(25,38,39)
        s.stamp(5,vST)
        GA=80
        def gather_reduce(bases, nfull):
            full=[(GA+12*st+4*k,6,bases[st],16*k) for st in range(nfull) for k in range(3)]
            mk=[(GA+12*st+4*k,6,bases[st],16*k) for st in range(nfull,len(bases)) for k in range(3)]
            for (d,_,_,_) in mk:
                A(f'v_mov_b32 v{d}, 0\nv_mov_b32 v{d+1}, 0\nv_mov_b32 v{d+2}, 0\nv_mov_b32 v{d+3}, s{sT}')
            s.poll(full,13,masked=mk)
            n=3*len(bases)
            for k in range(n): A(f'v_mov_b32 v{GA+4*k+3}, 0')
            for k in range(n):
                acc=40 if k%2==0 else 44
                c='0' if k<2 else f'v[{acc}:{acc+3}]'
                A(f'v_mfma_f32_16x16x32_bf16 v[{acc}:{acc+3}], v[{SEL+4*(k%3)}:{SEL+4*(k%3)+3}], v[{GA+4*k}:{GA+4*k+3}], {c}')
            for r in range(4): A(f'v_add_f32 v{40+r}, v{40+r}, v{44+r}')
            for sh in (4,8):
                for r in range(4):
                    A(f'v_add_f32_dpp v{40+r}, v{40+r}, v{40+r} row_ror:{sh} row_mask:0xf bank_mask:0xf')
        s.waitflags4(F_O,48)
        s.waitflag1(F_Q,48); s.fast_from_flag(48)
        A(f'v_mov_b32 v58, 0\nv_mov_b32 v59, s{sT}')
        gather_reduce(['s70','s71'],2)
        s.stamp(6,vST)
        s.round4(40,13)
        for r in range(4): A(f'v_mul_f32 v{40+r}, v{32+r}, v{40+r}')
        s.round4(40,13)
        for r in range(4): A(f'v_add_f32 v{40+r}, v{28+r}, v{40+r}')
        A('v_cvt_pk_bf16_f32 v44, v40, v41\nv_cvt_pk_bf16_f32 v45, v42, v43')
        A(f'v_mov_b32 v46, 0\nv_mov_b32 v47, s{sT}')
        A('s_mov_b32 s10, 0x000f000f\ns_mov_b32 s11, 0x000f000f\ns_mov_b64 exec, s[10:11]')
        s.gstore(f'buffer_store_dwordx4 v[44:47], v4, {WS}, s68 offen')
        A('s_mov_b64 exec, -1')
        s.unpack2(44,28,29); s.unpack2(45,30,31)
        A('v_add_f32 v56, v28, v29\nv_add_f32 v57, v30, v31\nv_add_f32 v56, v56, v57')
        A('v_mul_f32 v57, v28, v28\nv_fmac_f32 v57, v29, v29\nv_fmac_f32 v57, v30, v30\nv_fmac_f32 v57, v31, v31')
        for qp in ('[1,0,3,2]','[2,3,0,1]'):
            for r in (56,57): A(f'v_add_f32_dpp v{r}, v{r}, v{r} quad_perm:{qp} row_mask:0xf bank_mask:0xf')
        s.swap16([56,57],[52,53])
        A('s_mov_b32 s10, 1\ns_mov_b32 s11, 1\ns_mov_b64 exec, s[10:11]')
        s.gstore(f'buffer_store_dwordx4 v[56:59], v5, {WS}, s69 offen')
        A('s_mov_b64 exec, -1')
        s.stamp(7,vST)
        A(f's_and_b32 s8, s65, 7\ns_cmp_lg_u32 s8, s{sG}\ns_cbranch_scc1 L_tdone')
        gather_reduce(['s72','s73','s74','s75'],3)
        s.stamp(8,vST)
        s.round4(40,13)
        for r in range(4): A(f'v_mul_f32 v{40+r}, v{36+r}, v{40+r}')
        s.round4(40,13)
        for r in range(4): A(f'v_add_f32 v{40+r}, v{28+r}, v{40+r}')
        A('v_cvt_pk_bf16_f32 v44, v40, v41\nv_cvt_pk_bf16_f32 v45, v42, v43')
        A('s_mov_b32 s10, 0x000f000f\ns_mov_b32 s11, 0x000f000f\ns_mov_b64 exec, s[10:11]')
        A(f'buffer_store_dwordx2 v[44:45], v2, {SD}, 0 offen')
        A('s_mov_b64 exec, -1')
        A('s_cmp_lg_u32 s65, 0\ns_cbranch_scc1 L_tdone')
        A(f'v_mov_b32 v44, s{sT}\nv_mov_b32 v45, 0\ns_mov_b64 exec, 1\nbuffer_store_dword v44, v45, {WS}, 0 offen sc1\ns_mov_b64 exec, -1')
        s.stamp(9,vST)
        A('s_branch L_tdone')

        A('L_ffn2:')
        A(f's_lshl_b32 s66, s{sTW}, 10\ns_add_u32 s66, s66, {hex(WS_MOD+24*512)}\ns_add_u32 s67, s66, {8*512}')
        s.poll([(16,5,'s66',0),(20,5,'s67',0)],12)
        s.unpack2(16,24,25); s.unpack2(17,26,27)
        s.unpack2(20,28,29); s.unpack2(21,30,31)
        for r in range(4): A(f'v_add_f32 v{28+r}, 1.0, v{28+r}')
        s.round4(28,12)
        A(f'v_lshrrev_b32 v8, 5, v0\nv_and_b32 v9, 31, v0\nv_lshlrev_b32 v10, 11, v8\nv_lshlrev_b32 v11, 4, v9\ns_lshl_b32 s8, s{sTW}, 9\nv_add3_u32 v13, v10, v11, s8')
        A('v_lshlrev_b32 v10, 8, v8\nv_and_b32 v11, 15, v0\nv_lshlrev_b32 v11, 4, v11\nv_add_u32 v14, v10, v11')
        A(f's_lshl_b32 s70, s{sG}, 12\ns_add_u32 s70, s70, {hex(WS_X1)}\ns_lshl_b32 s71, s{sG}, 9\ns_add_u32 s71, s71, {hex(WS_XS)}')
        A(f'v_and_b32 v96, 31, v0\nv_lshlrev_b32 v96, 4, v96\nv_add_u32 v2, {L_PART}, v96')
        A(f's_lshl_b32 s8, s{sTW}, 8\ns_add_u32 s8, s8, {L_H2}\nv_lshrrev_b32 v97, 1, v96\nv_add_u32 v97, s8, v97')
        A('v_and_b32 v10, 1, v0\nv_lshlrev_b32 v10, 7, v10\nv_lshrrev_b32 v12, 4, v0\nv_lshlrev_b32 v12, 4, v12\nv_add3_u32 v98, v10, v12, s8')
        A(f'v_and_b32 v99, 15, v0\nv_mul_u32_u24 v99, 48, v99\ns_mul_i32 s8, s{sTW}, {16*48}\ns_mul_i32 s75, s65, 3072\ns_add_u32 s75, s75, s8\ns_add_u32 s75, s75, {hex(WS_YO)}')
        s.stamp(5,vST)
        s.waitflags4(F_O,8)
        s.poll([(16,13,'s70',0),(20,14,'s71',0)],10)
        s.stamp(6,vST)
        s.rowsum16([20,21])
        A('v_mul_f32 v20, 0x3b000000, v20\nv_mul_f32 v21, 0x3b000000, v21\nv_fma_f32 v21, -v20, v20, v21\nv_max_f32 v21, 0, v21')
        s.ln_final(20,21,12)
        s.unpack2(16,8,9); s.unpack2(17,10,11)
        s.ln_apply(8,20,21,12)
        s.mod_apply(8,28,24,12)
        A('ds_write_b64 v3, v[12:13]\ns_waitcnt lgkmcnt(0)')
        s.mm(4,2,T,8,ACC,R)
        s.part_write(R,6)
        s.setflag(F_T1,8,9,swave=sTW)
        s.waitflags4(F_T1,8,extra=s.part_read_list(32,2))
        s.stamp(7,vST)
        s.final_sum(32)
        s.round4(32,12)
        for r in range(4): A(f'v_mov_b32_dpp v{28+r}, v{32+r} row_shl:8 row_mask:0xf bank_mask:0xf bound_ctrl:0')
        s.silu4(32,16)
        s.round4(32,12)
        for r in range(4): A(f'v_mul_f32 v{32+r}, v{32+r}, v{28+r}')
        A('v_cvt_pk_bf16_f32 v12, v32, v33\nv_cvt_pk_bf16_f32 v13, v34, v35')
        A('ds_write_b64 v97, v[12:13]\ns_waitcnt lgkmcnt(0)')
        s.mm(98,1,RAW,8,ACC,None)
        s.publishR(lambda b,j: ACC+4*j+b,16,99,'s75','0xffff')
        s.stamp(9,vST)
        A('L_tdone:')
        s.stamp_flush(vST, 8)
        s.endpgm()

    def build(s):
        A=s.A
        s.prologue(); s.kv(); s.tile()
        A('L_exit:\ns_endpgm')
        body,nn=fix_hazards(A.L)
        hdr=[f'; @launch grid=(256,1,1) block=(512,1,1) lds={L_SIZE}', f'; roles: MF={I_MF} BB={I_BB} WQ={I_WQ} WO={I_WO} MR={I_MR} FFN={I_FFN}', f'; nt: {s.o["nt"]}',
             '.amdgcn_target "amdgcn-amd-amdhsa--gfx950"','.text',f'.globl {NAME}_kernel','.p2align 8',f'.type {NAME}_kernel,@function',f'{NAME}_kernel:']
        ftr=f'''.section .rodata,"a"
.p2align 6
.amdhsa_kernel {NAME}_kernel
  .amdhsa_next_free_vgpr 256
  .amdhsa_next_free_sgpr 102
  .amdhsa_accum_offset 256
  .amdhsa_group_segment_fixed_size 0
  .amdhsa_kernarg_size 112
  .amdhsa_user_sgpr_count 2
  .amdhsa_user_sgpr_kernarg_segment_ptr 1
  .amdhsa_system_sgpr_workgroup_id_x 1
.end_amdhsa_kernel'''
        return '\n'.join(hdr+body)+'\n'+ftr+'\n', nn

def gen(out, prof=False, **opts):
    k=K(prof=prof,opts=opts)
    txt,nn=k.build()
    open(out,'w').write(txt)
    return txt.count('\n'),nn

if __name__=='__main__':
    import argparse
    ap=argparse.ArgumentParser()
    ap.add_argument('-o',default='k5.s'); ap.add_argument('--prof',action='store_true')
    ap.add_argument('opts',nargs='*')
    a=ap.parse_args()
    opts={}
    for kv in a.opts:
        k,v=kv.split('='); opts[k]=int(v) if v.lstrip('-').isdigit() else v
    print('written',a.o,gen(a.o,a.prof,**opts))
```
